```python
import torch

def _softmax(x, axis=-1):
    return torch.softmax(x, dim=axis)

def _gelu(x):
    return torch.nn.functional.gelu(x, approximate='tanh')

def _silu(x):
    return torch.nn.functional.silu(x)

def _sigmoid(x):
    return torch.sigmoid(x)

def _layernorm(x, axis=-1, eps=1e-05):
    m = x.mean(dim=axis, keepdim=True)
    v = x.var(dim=axis, keepdim=True, unbiased=False)
    return (x - m) / torch.sqrt(v + eps)

def _scatter_add(tgt, idx, src, axis=0):
    return tgt.clone().index_add_(axis, idx, src)

def _segment_sum(src, seg, n):
    out = torch.zeros((n,) + src.shape[1:], dtype=src.dtype)
    return out.index_add_(0, seg, src)

def _pad(x, pw):
    flat = tuple((v for pair in reversed(pw) for v in pair))
    return torch.nn.functional.pad(x, flat)
kernel_name = 'adaLN_cond__ssm_conv_s4d__glu_gated_geglu__prompt'

def setup_inputs():

    _w = lambda a: (lambda t: t.to(torch.bfloat16) if t.is_floating_point() else t)(torch.as_tensor(a))

    def _A_setup():
        Bsz, L, D, N = (1, 2048, 640, 128)
        return {'u': _w((lambda *s: torch.randn(*s, dtype=torch.bfloat16) * 0.05)(Bsz, L, D)), 'log_A_real': _w((lambda *s: torch.randn(*s, dtype=torch.bfloat16) * 3.2)(D, N) * 0.5), 'A_imag': _w((lambda *s: torch.randn(*s, dtype=torch.bfloat16) * 0.05)(D, N) * 3.14), 'C_real': _w((lambda *s: torch.randn(*s, dtype=torch.bfloat16) * 0.4)(D, N) / N ** 0.5), 'C_imag': _w((lambda *s: torch.randn(*s, dtype=torch.bfloat16) * 0.4)(D, N) / N ** 0.5), 'log_dt': _w((lambda *s: torch.randn(*s, dtype=torch.bfloat16) * 0.05)(D) * 0.5 - 4.0), 'D_skip': _w((lambda *s: torch.randn(*s, dtype=torch.bfloat16) * 0.05)(D))}
    _A_in = _A_setup()

    def _B_setup():
        B, S, Dm, Df = (1, 2048, 640, 1728)
        return {'x': _w((lambda *s: torch.randn(*s, dtype=torch.bfloat16) * 0.05)(B, S, Dm)), 'w_gate': _w((lambda *s: torch.randn(*s, dtype=torch.bfloat16) * 0.8)(Dm, Df) * Dm ** (-0.5)), 'w_up': _w((lambda *s: torch.randn(*s, dtype=torch.bfloat16) * 0.8)(Dm, Df) * Dm ** (-0.5)), 'w_down': _w((lambda *s: torch.randn(*s, dtype=torch.bfloat16) * 0.8)(Df, Dm) * Df ** (-0.5))}
    _B_in = _B_setup()
    return {'A_u': _A_in['u'], 'A_log_A_real': _A_in['log_A_real'], 'A_A_imag': _A_in['A_imag'], 'A_C_real': _A_in['C_real'], 'A_C_imag': _A_in['C_imag'], 'A_log_dt': _A_in['log_dt'], 'A_D_skip': _A_in['D_skip'], 'B_x': _B_in['x'], 'B_w_gate': _B_in['w_gate'], 'B_w_up': _B_in['w_up'], 'B_w_down': _B_in['w_down'], 'c': _w((lambda *s: torch.randn(*s, dtype=torch.bfloat16) * 0.2)(1, 640) * 8.0), 'w_mod': _w((lambda *s: torch.randn(*s, dtype=torch.bfloat16) * 0.2)(640, 6 * 640) * 640 ** (-0.5) * 8.0)}

def reference(A_u, A_log_A_real, A_A_imag, A_C_real, A_C_imag, A_log_dt, A_D_skip, B_x, B_w_gate, B_w_up, B_w_down, c, w_mod):

    def _A_ref(u, log_A_real, A_imag, C_real, C_imag, log_dt, D_skip):
        L = u.shape[1]
        dt = torch.exp(log_dt)
        A = -torch.exp(log_A_real) + 1j * A_imag
        C = (C_real + 1j * C_imag) * dt[:, None]
        pos = (lambda x, dt: x.to(dt))(torch.arange(L), log_dt.dtype)
        P = torch.exp((A * dt[:, None])[:, :, None] * pos[None, None, :])
        K = 2.0 * torch.einsum('dn,dnl->dl', C, P).real
        L2 = 2 * L
        u_t = (lambda x, *d: x.permute(*d))(u, 0, 2, 1)
        Kf = (lambda x, *a, **k: torch.fft.rfft(x.float(), *a, **k))(K, L2)
        Uf = (lambda x, *a, **k: torch.fft.rfft(x.float(), *a, **k))(u_t, L2)
        y = (lambda x, *a, **k: torch.fft.irfft(x, *a, **k).to(torch.bfloat16))(Uf * Kf[None, :, :], L2)[:, :, :L]
        y = (lambda x, *d: x.permute(*d))(y, 0, 2, 1)
        return y + u * D_skip[None, None, :]

    def _B_ref(x, w_gate, w_up, w_down):
        g = torch.einsum('bsd,df->bsf', x, w_gate)
        u = torch.einsum('bsd,df->bsf', x, w_up)
        h = _gelu(g) * u
        return torch.einsum('bsf,fd->bsd', h, w_down)
    x = A_u
    mod = (_silu(c) @ w_mod).reshape(c.shape[0], 6, 1, -1)
    sa, ca, ga, sb, cb, gb = (mod[:, 0].clone(), mod[:, 1].clone(), mod[:, 2].clone(), mod[:, 3].clone(), mod[:, 4].clone(), mod[:, 5].clone())
    h = _layernorm(x, axis=-1) * (1 + ca) + sa
    x = x + ga * _A_ref(h, A_log_A_real, A_A_imag, A_C_real, A_C_imag, A_log_dt, A_D_skip)
    h = _layernorm(x, axis=-1) * (1 + cb) + sb
    x = x + gb * _B_ref(h, B_w_gate, B_w_up, B_w_down)
    return x
```

```python
import re

def v(i): return f"v{i}"
def a(i): return f"a{i}"
def s(i): return f"s{i}"
def vr(i, n): return f"v[{i}:{i+n-1}]" if n > 1 else f"v{i}"
def ar(i, n): return f"a[{i}:{i+n-1}]" if n > 1 else f"a{i}"
def sr(i, n): return f"s[{i}:{i+n-1}]" if n > 1 else f"s{i}"

_reg_re = re.compile(r'^(-|\|)?(abs\()?([vas])(\d+|\[(\d+):(\d+)\])\)?\|?$')

def parse_reg(tok):
    tok = tok.strip()
    if tok in ('vcc',): return {('s', 'vcc')}
    if tok in ('vcc_lo', 'vcc_hi'): return {('s', 'vcc')}
    if tok == 'exec' or tok in ('exec_lo', 'exec_hi'): return {('s', 'exec')}
    if tok == 'm0': return {('s', 'm0')}
    m = _reg_re.match(tok)
    if not m: return set()
    k = m.group(3)
    if m.group(5) is not None:
        return {(k, i) for i in range(int(m.group(5)), int(m.group(6)) + 1)}
    return {(k, int(m.group(4)))}

def split_ops(rest):
    ops = []; depth = 0; cur = ''
    for ch in rest:
        if ch in '[(': depth += 1
        if ch in '])': depth -= 1
        if ch == ',' and depth == 0:
            ops.append(cur.strip()); cur = ''
        else:
            cur += ch
    if cur.strip(): ops.append(cur.strip())
    return ops

TRANS = ('v_exp_f32', 'v_log_f32', 'v_rcp_f32', 'v_rsq_f32', 'v_sqrt_f32', 'v_sin_f32', 'v_cos_f32', 'v_rcp_iflag_f32')

class Ins:
    __slots__ = ('text', 'mn', 'ops', 'mods', 'rd', 'wr', 'cls', 'passes', 'C', 'AB', 'isdpp', 'storedata', 'label', 'lds_dma', 'nop')
    def __init__(self, text):
        self.text = text
        t = text.split(';')[0].split('//')[0].strip()
        self.label = None; self.rd = set(); self.wr = set(); self.cls = 'other'; self.passes = 0
        self.C = set(); self.AB = set(); self.isdpp = False; self.storedata = set(); self.lds_dma = False; self.nop = 0
        self.mn = ''; self.ops = []; self.mods = ''
        if not t: self.cls = 'empty'; return
        if t.endswith(':'):
            self.label = t[:-1]; self.cls = 'label'; return
        if t.startswith('.'):
            self.cls = 'directive'; return
        parts = t.split(None, 1)
        mn = parts[0]; rest = parts[1] if len(parts) > 1 else ''
        self.mn = mn
        ops = split_ops(rest)
        mods = ''
        if ops:
            last = ops[-1].split(None, 1)
            if len(last) > 1 and '(' not in last[0]:
                ops[-1] = last[0]; mods = last[1]
            elif len(last) > 1 and last[0].endswith(')'):
                ops[-1] = last[0]; mods = last[1]
        self.ops = ops; self.mods = mods
        R = [parse_reg(o) for o in ops]
        base = re.sub(r'_(e32|e64|dpp|sdwa)$', '', mn)
        if mn.endswith('_dpp') or 'quad_perm' in mods or 'row_' in mods or 'wave_' in mods:
            self.isdpp = True
        if mn.startswith('v_mfma'):
            self.cls = 'mfma'
            self.wr = R[0]; self.AB = R[1] | R[2]; self.C = R[3] if len(R) > 3 else set()
            self.rd = self.AB | self.C
            if '32x32x16' in mn or '32x32x8' in mn: self.passes = 8
            elif '16x16x32' in mn or '16x16x16' in mn: self.passes = 4
            elif '4x4x4' in mn: self.passes = 2
            else: raise ValueError('unknown mfma ' + mn)
        elif mn.startswith('v_'):
            self.cls = 'valu'
            if base in TRANS: self.cls = 'trans'
            if base.startswith('v_cmp'):
                self.wr = R[0]; self.rd = set().union(*R[1:])
                if base.startswith('v_cmpx'): self.wr |= {('s', 'exec')}
            elif base in ('v_readfirstlane_b32', 'v_readlane_b32'):
                self.wr = R[0]; self.rd = set().union(*R[1:]); self.cls = 'readlane'
            elif base == 'v_writelane_b32':
                self.wr = R[0]; self.rd = set().union(*R) ; self.cls = 'writelane'
            elif base.startswith('v_permlane'):
                self.wr = R[0] | R[1]; self.rd = R[0] | R[1]; self.cls = 'permlane'
            elif base in ('v_add_co_u32', 'v_sub_co_u32', 'v_addc_co_u32', 'v_subb_co_u32', 'v_subrev_co_u32'):
                self.wr = R[0] | R[1]; self.rd = set().union(*R[2:])
            elif base in ('v_fmac_f32', 'v_dot2c_f32_bf16', 'v_pk_fmac_f16', 'v_mac_f32'):
                self.wr = R[0]; self.rd = set().union(*R)
            elif base == 'v_cndmask_b32':
                self.wr = R[0]; self.rd = set().union(*R[1:])
                if len(ops) == 3: self.rd |= {('s', 'vcc')}
            else:
                self.wr = R[0]; self.rd = set().union(*R[1:]) if len(R) > 1 else set()
                if self.isdpp or 'd16' in mn or 'dst_unused:UNUSED_PRESERVE' in mods:
                    self.rd |= R[0]
                if 'op_sel' in mods and base.startswith('v_cvt') : pass
            if self.cls in ('valu', 'trans', 'readlane', 'writelane', 'permlane'):
                self.rd |= {('s', 'exec')} if False else set()
        elif mn.startswith('ds_'):
            self.cls = 'ds'
            if mn.startswith('ds_read') or mn.startswith('ds_bpermute') or mn.startswith('ds_permute') or mn.startswith('ds_swizzle'):
                self.wr = R[0]; self.rd = set().union(*R[1:])
                if 'd16' in mn: self.rd |= R[0]
            else:
                self.rd = set().union(*R)
        elif mn.startswith('buffer_') or mn.startswith('global_'):
            self.cls = 'vmem'
            toks = mods.split()
            if mn in ('buffer_inv', 'buffer_wbl2'):
                pass
            elif 'load' in mn:
                if 'lds' in toks or '_lds_' in mn:
                    self.lds_dma = True; self.rd = set().union(*R) | {('s', 'm0')}
                else:
                    self.wr = R[0]; self.rd = set().union(*R[1:])
                    if 'd16' in mn: self.rd |= R[0]
            elif 'store' in mn:
                self.rd = set().union(*R)
                if mn.startswith('buffer_'): self.storedata = R[0]
                else: self.storedata = R[1]
                if not ('x3' in mn or 'x4' in mn): self.storedata = set()
            elif 'atomic' in mn:
                self.rd = set().union(*R)
                if 'sc0' in toks: self.wr = R[0]
            else: raise ValueError(text)
        elif mn.startswith('s_'):
            self.cls = 'salu'
            if mn == 's_nop':
                self.nop = int(ops[0], 0) + 1; self.cls = 'nop'
            elif mn in ('s_waitcnt', 's_barrier', 's_endpgm', 's_sleep', 's_setprio', 's_branch') or mn.startswith('s_cbranch'):
                self.cls = 'ctl'
                if mn == 's_cbranch_vccz' or mn == 's_cbranch_vccnz': self.rd = {('s', 'vcc')}
                if mn.startswith('s_cbranch_exec'): self.rd = {('s', 'exec')}
            elif mn.startswith('s_cmp') or mn.startswith('s_bitcmp'):
                self.rd = set().union(*R)
            elif mn.startswith('s_load') or mn.startswith('s_buffer_load') or mn in ('s_memtime', 's_memrealtime'):
                self.cls = 'smem'; self.wr = R[0]; self.rd = set().union(*R[1:]) if len(R) > 1 else set()
            elif 'saveexec' in mn:
                self.wr = R[0] | {('s', 'exec')}; self.rd = R[1] | {('s', 'exec')}
            elif mn in ('s_set_gpr_idx_on', 's_set_gpr_idx_off', 's_set_gpr_idx_idx'):
                self.rd = set().union(*R) if R else set()
            elif mn == 's_getpc_b64':
                self.wr = R[0]
            elif mn in ('s_addk_i32', 's_mulk_i32'):
                self.wr = R[0]; self.rd = R[0]
            else:
                self.wr = R[0] if R else set(); self.rd = set().union(*R[1:]) if len(R) > 1 else set()
        else:
            raise ValueError('cannot parse: ' + text)

    def is_real(self):
        return self.cls not in ('empty', 'label', 'directive')
    def states(self):
        return self.nop if self.cls == 'nop' else 1

VALUISH = ('valu', 'trans', 'readlane', 'writelane', 'permlane')

def only(regs, kinds): return {r for r in regs if r[0] in kinds}

def required_gap(p, c):
    need = 0
    pv = only(p.wr, 'va'); ps = only(p.wr, 's')
    if p.cls in VALUISH:
        if pv:
            if c.cls == 'mfma' and (pv & c.rd): need = max(need, 2)
            if c.cls == 'readlane' and (pv & c.rd): need = max(need, 1)
            if c.cls == 'permlane' and (pv & c.rd): need = max(need, 2)
            if c.isdpp and c.cls in VALUISH and (pv & c.rd): need = max(need, 2)
            if p.cls == 'trans' and c.cls in VALUISH + ('mfma',) and (pv & c.rd): need = max(need, 1)
            if ('sdwa' in p.mn or ('op_sel' in p.mods and not p.mn.startswith('v_pk_'))) and c.cls in VALUISH and (pv & (c.rd | c.wr)): need = max(need, 1)
        if ps:
            if c.cls == 'vmem' and (ps & c.rd): need = max(need, 5)
            if c.cls in VALUISH and (ps & c.rd):
                need = max(need, 4 if c.cls in ('readlane', 'writelane') else 2)
            if c.cls in ('salu', 'smem', 'ctl') and (ps & c.rd): need = max(need, 1 if c.cls != 'smem' else 5)
            if ('s', 'exec') in ps:
                if c.cls == 'mfma': need = max(need, 4)
                if c.isdpp: need = max(need, 5)
                if c.cls in ('readlane', 'writelane', 'permlane'): need = max(need, 4)
    if p.cls == 'mfma':
        n = p.passes
        d = p.wr
        if c.cls == 'mfma':
            if d & c.AB: need = max(need, {2: 5, 4: 8, 8: 12}[n])
            if d & c.C:
                if d == c.C and c.passes == n: need = max(need, 2 if n == 2 else 0)
                else: need = max(need, {2: 4, 4: 6, 8: 10}[n])
            elif d & c.wr:
                need = max(need, {2: 5, 4: 8, 8: 12}[n])
        elif c.cls in VALUISH or c.cls in ('ds', 'vmem'):
            if d & (c.rd | c.wr): need = max(need, {2: 5, 4: 8, 8: 12}[n])
        if c.cls in VALUISH and (p.C & c.wr): need = max(need, {2: 1, 4: 3, 8: 7}[n])
        if c.cls in ('ds', 'vmem') and (p.C & c.wr): need = max(need, {2: 1, 4: 3, 8: 7}[n])
    if p.cls == 'vmem' and p.storedata:
        if c.cls in VALUISH + ('mfma',) and (p.storedata & c.wr): need = max(need, 2)
        elif (p.storedata & c.wr): need = max(need, 1)
    if p.cls == 'salu' and ('s', 'm0') in p.wr and c.cls == 'vmem' and c.lds_dma: need = max(need, 1)
    if p.cls == 'salu' and ('s', 'exec') in p.wr and c.isdpp: need = max(need, 0)
    return need

LOOKBACK = 24

def fix_hazards(lines):
    out = []; added = 0
    for ins in lines:
        if ins.is_real() and ins.cls != 'nop':
            dist = 0; need_extra = 0
            for p in reversed(out):
                if not p.is_real(): continue
                g = required_gap(p, ins)
                if g > dist: need_extra = max(need_extra, g - dist)
                dist += p.states()
                if dist > LOOKBACK: break
            while need_extra > 0:
                k = min(need_extra, 16)
                out.append(Ins(f"s_nop {k-1}")); added += 1
                need_extra -= k
        out.append(ins)
    return out, added

def check_hazards(trace):
    errs = []
    real = [i for i in trace if i.is_real()]
    for j, ins in enumerate(real):
        if ins.cls == 'nop': continue
        dist = 0
        for p in reversed(real[max(0, j - LOOKBACK):j]):
            g = required_gap(p, ins)
            if g > dist: errs.append(f"hazard: '{p.text.strip()}' -> '{ins.text.strip()}' needs {g} has {dist}")
            dist += p.states()
            if dist > LOOKBACK: break
    return errs

_wc = re.compile(r'(vmcnt|lgkmcnt|expcnt)\((\d+)\)')
def check_waits(trace):
    errs = []
    vm = []
    lg = []
    for ins in trace:
        if not ins.is_real(): continue
        if ins.mn == 's_waitcnt':
            for k, n in _wc.findall(ins.text):
                n = int(n)
                if k == 'vmcnt':
                    if len(vm) > n: vm = vm[len(vm) - n:] if n else []
                elif k == 'lgkmcnt':
                    if any(x[0] == 'smem' for x in lg):
                        if n == 0: lg = []
                    elif len(lg) > n: lg = lg[len(lg) - n:] if n else []
            continue
        if ins.mn == 's_endpgm':
            vm = []; lg = []; continue
        touched = ins.rd | ins.wr
        for q in vm:
            if q & touched: errs.append(f"vm wait missing before '{ins.text.strip()}' regs {sorted(q & touched)[:4]}")
        for k, q in lg:
            if q & touched: errs.append(f"lgkm wait missing before '{ins.text.strip()}' regs {sorted(q & touched)[:4]}")
        if ins.cls == 'vmem' and ins.mn not in ('buffer_inv', 'buffer_wbl2'):
            vm.append(set(ins.wr))
            if len(vm) > 63: vm = vm[-63:]
        elif ins.cls == 'vmem':
            vm.append(set())
        elif ins.cls == 'ds':
            lg.append(('ds', set(ins.wr)))
        elif ins.cls == 'smem':
            lg.append(('smem', set(ins.wr)))
    return errs


class Prog:
    def __init__(self):
        self.items = []
        self.stack = [self.items]
        self.uid = 0
        self.vm = 0
        self.lg = 0
    def __call__(self, text):
        for line in text.strip('\n').split('\n'):
            line = line.rstrip()
            if not line.strip(): continue
            ins = Ins(line)
            self.stack[-1].append(ins)
            if ins.cls == 'vmem': self.vm += 1
            if ins.cls == 'ds': self.lg += 1
            if ins.cls == 'smem': self.lg += 1
        return self
    def c(self, text):
        self.stack[-1].append(Ins('; ' + text))
    def newlabel(self, base='L'):
        self.uid += 1
        return f"{base}_{self.uid}"
    def label(self, name): self(name + ':')
    def vt(self): return self.vm - 1
    def lt(self): return self.lg - 1
    def wait_vm(self, ticket):
        n = self.vm - 1 - ticket
        assert n >= 0
        self(f"s_waitcnt vmcnt({min(n, 63)})")
    def wait_lg(self, ticket):
        n = self.lg - 1 - ticket
        assert n >= 0
        self(f"s_waitcnt lgkmcnt({min(n, 15)})")
    def loop_begin(self, label):
        blk = ['loop', label, []]
        self.stack[-1].append(blk)
        self.stack.append(blk[2])
        self(label + ':')
    def loop_end(self):
        self.stack.pop()
    def flat(self, unroll=1, items=None):
        out = []
        for it in (self.items if items is None else items):
            if isinstance(it, list) and it[0] == 'loop':
                for _ in range(unroll):
                    out += self.flat(unroll, it[2])
            else:
                out.append(it)
        return out
    def fix(self):
        def rec(items, prefix):
            res = []
            ctx = list(prefix)
            for it in items:
                if isinstance(it, list) and it[0] == 'loop':
                    body = rec(it[2], ctx[-LOOKBACK:])
                    flatb = self.flat(1, body)
                    body2 = rec(body, flatb[-LOOKBACK:])
                    it[2] = body2
                    res.append(it)
                    ctx += self.flat(1, body2)
                else:
                    fixed, _ = fix_hazards(ctx[-LOOKBACK:] + [it])
                    new = fixed[len(ctx[-LOOKBACK:]):]
                    res += new
                    ctx += new
            return res
        self.items[:] = rec(self.items, [])
    def text(self):
        out = []
        for ins in self.flat(1):
            t = ins.text.strip()
            if ins.cls in ('label',): out.append(t)
            else: out.append('    ' + t)
        return '\n'.join(out) + '\n'
    def verify(self, unroll=3):
        tr = self.flat(unroll)
        return check_hazards(tr) + check_waits(tr)


def interleave(main, fill, start=0, per=None):
    out = []
    if per is None: per = len(fill) / max(1, len(main) - start)
    acc = 0.0; fi = 0
    for i, m in enumerate(main):
        out.append(m)
        if i >= start:
            acc += per
            while acc >= 1.0 - 1e-9 and fi < len(fill):
                out.append(fill[fi]); fi += 1; acc -= 1.0
    out += fill[fi:]
    return out
```

```python
import sys
sys.path.insert(0, 'work')
from dsl import *

L, D, NMODE, DF = 2048, 640, 128, 1728
KA = dict(x=0, logA=8, Aim=16, Cre=24, Cim=32, logdt=40, dskip=48, Bx=56, Wg=64, Wu=72, Wd=80, c=88, wmod=96, out=104, dbg=112, ws=120)
NB = dict(x=L*D*2, logA=D*NMODE*2, Aim=D*NMODE*2, Cre=D*NMODE*2, Cim=D*NMODE*2, logdt=D*2, dskip=D*2,
          Wg=D*DF*2, Wu=D*DF*2, Wd=DF*D*2, c=D*2, wmod=D*6*D*2, out=L*D*2, dbg=256, ws=0x2000000)
WS_NF   = 0x0000000
WS_X1F  = 0x0280000
WS_MODP = 0x0500000
WS_CWS  = 0x0510000
WS_SYNC = 0x0520000
WS_WPF  = 0x0600000
WS_WDF  = 0x0A40000
WS_H2F  = 0x0C60000
SC = ' sc1'

S_WG = 2
S_WAVE = 4
S_T0 = 5; S_T1 = 6; S_T2 = 7
SRD_WS = 8
SRD_A = 12; SRD_B = 16; SRD_C = 20; SRD_D = 24; SRD_E = 28
LOG2E = 1.4426950408889634

def f2u(x):
    import struct
    return struct.unpack('<I', struct.pack('<f', x))[0]
def fl(x): return hex(f2u(x))

def load_srd(p, srd, name, tmp=None):
    p(f"s_load_dwordx2 {sr(srd,2)}, s[0:1], {KA[name]}")
def finish_srd(p, srd, name):
    p(f"s_mov_b32 {s(srd+2)}, {hex(NB[name])}")
    p(f"s_mov_b32 {s(srd+3)}, 0x00020000")

def srds(p, pairs):
    for srd, name in pairs: load_srd(p, srd, name)
    p("s_waitcnt lgkmcnt(0)")
    for srd, name in pairs: finish_srd(p, srd, name)

def prologue(p, nwg=256):
    p(f"s_cmp_ge_u32 s2, {nwg}")
    p("s_cbranch_scc1 L_exit")
    p(f"s_load_dwordx2 {sr(SRD_WS,2)}, s[0:1], {KA['ws']}")
    p("v_lshrrev_b32 v1, 6, v0")
    p("s_nop 0")
    p(f"v_readfirstlane_b32 {s(S_WAVE)}, v1")
    p("v_and_b32 v1, 63, v0")
    p("s_waitcnt lgkmcnt(0)")
    finish_srd(p, SRD_WS, 'ws')

def row16_sum(p, r, t):
    for k in (8, 4, 2, 1):
        p(f"v_add_f32_dpp {v(r)}, {v(r)}, {v(r)} row_ror:{k} row_mask:0xf bank_mask:0xf")

def cross_row_sum(p, r, t):
    p(f"v_mov_b32 {v(t)}, {v(r)}")
    p(f"v_permlane16_swap_b32 {v(t)}, {v(r)}")
    p(f"v_add_f32 {v(r)}, {v(r)}, {v(t)}")
    p(f"v_mov_b32 {v(t)}, {v(r)}")
    p(f"v_permlane32_swap_b32 {v(t)}, {v(r)}")
    p(f"v_add_f32 {v(r)}, {v(r)}, {v(t)}")

def unpack(p, lo, hi, src):
    p(f"v_lshlrev_b32 {v(lo)}, 16, {v(src)}")
    p(f"v_and_b32 {v(hi)}, 0xffff0000, {v(src)}")

def kernel_text(name, body, vgpr=256, agpr=256, sgpr=102):
    acc = (vgpr + 3)//4*4
    return f""".text
.globl {name}
.p2align 8
.type {name},@function
{name}:
{body}
.section .rodata,"a"
.p2align 6
.amdhsa_kernel {name}
  .amdhsa_next_free_vgpr {acc + agpr if agpr else vgpr}
  .amdhsa_next_free_sgpr {sgpr}
  .amdhsa_accum_offset {acc}
  .amdhsa_group_segment_fixed_size 0
  .amdhsa_kernarg_size 128
  .amdhsa_user_sgpr_count 2
  .amdhsa_user_sgpr_kernarg_segment_ptr 1
  .amdhsa_system_sgpr_workgroup_id_x 1
.end_amdhsa_kernel
"""
```

```python
import sys, importlib
from common import *
import phA, phK, phB, phP, phC, phD
import re
sys.path.insert(0, 'work')
from build import build
def finish(p):
    p("s_waitcnt vmcnt(0) lgkmcnt(0)")
    p.label("L_exit")
    p("s_endpgm")
def make(name, fn):
    p = Prog()
    prologue(p)
    fn(p)
    finish(p)
    p.fix()
    errs = p.verify()
    txt = re.sub(r'\bL_(\w+)', lambda m: f'L_{name}_{m.group(1)}', p.text())
    return kernel_text(name, txt), errs
def kK_test(p):
    p("s_cmp_ge_u32 s2, 160")
    p("s_cbranch_scc1 L_exit")
    phK.kgen(p)
    phK.kdump(p)
def kB_test(p):
    p("s_cmp_ge_u32 s2, 160")
    p("s_cbranch_scc1 L_exit")
    phK.kgen(p)
    phB.conv_xloads(p)
    phB.conv(p)
def kP_test(p):
    p("s_cmp_lt_u32 s2, 160")
    p("s_cbranch_scc1 L_exit")
    phP.prep(p)
def kC_test(p):
    phC.prefetch(p)
    phC.main(p)
def kD_test(p):
    phD.prefetch(p)
    phD.main(p)
KERNELS = [("kD_kernel", kD_test), ("kC_kernel", kC_test), ("kP_kernel", kP_test), ("kB_kernel", kB_test), ("kA1_kernel", phA.phaseA1), ("kK_kernel", kK_test)]
if __name__ == '__main__':
    out = '.amdgcn_target "amdgcn-amd-amdhsa--gfx950"\n'
    for name, fn in KERNELS:
        t, errs = make(name, fn)
        for e in errs[:20]: print(name, e)
        out += t
    open('dev.s', 'w').write(out)
    print(build('dev.s', 'dev.co'))
```

```python
from common import *

def ln1(p):
    p.c("---- LN1 ----")
    srds(p, [(SRD_A, 'x')])
    p("v_lshrrev_b32 v2, 4, v1")
    p("v_and_b32 v3, 15, v1")
    p(f"s_lshl_b32 {s(S_T0)}, s2, 4")
    p(f"s_lshl_b32 {s(S_T1)}, {s(S_WAVE)}, 2")
    p(f"s_add_u32 {s(S_T0)}, {s(S_T0)}, {s(S_T1)}")
    p(f"s_mul_i32 {s(S_T0)}, {s(S_T0)}, 1280")
    p("v_mul_u32_u24 v4, 1280, v2")
    p("v_lshl_add_u32 v4, v3, 3, v4")
    X = 10; F = 30
    for q in range(10):
        p(f"buffer_load_dwordx2 {vr(X+2*q,2)}, v4, {sr(SRD_A,4)}, {s(S_T0)} offen offset:{128*q}")
    p("v_mul_u32_u24 v5, 136, v3")
    p(f"v_add_u32 v6, {s(S_T1)}, v2")
    p("v_lshl_add_u32 v5, v6, 3, v5")
    p("s_waitcnt vmcnt(0)")
    for k in range(20):
        unpack(p, F+2*k, F+2*k+1, X+k)
    p(f"v_add_f32 v70, {v(F)}, {v(F+1)}")
    p(f"v_add_f32 v71, {v(F+2)}, {v(F+3)}")
    for k in range(4, 40, 2):
        p(f"v_add_f32 v70, v70, {v(F+k)}")
        p(f"v_add_f32 v71, v71, {v(F+k+1)}")
    p("v_add_f32 v70, v70, v71")
    row16_sum(p, 70, 71)
    p(f"v_mul_f32 v70, {fl(1.0/640)}, v70")
    for k in range(40):
        p(f"v_sub_f32 {v(F+k)}, {v(F+k)}, v70")
    p(f"v_mul_f32 v72, {v(F)}, {v(F)}")
    p(f"v_mul_f32 v73, {v(F+1)}, {v(F+1)}")
    for k in range(2, 40, 2):
        p(f"v_fmac_f32 v72, {v(F+k)}, {v(F+k)}")
        p(f"v_fmac_f32 v73, {v(F+k+1)}, {v(F+k+1)}")
    p("v_add_f32 v72, v72, v73")
    row16_sum(p, 72, 73)
    p(f"s_mov_b32 {s(S_T2)}, {fl(1e-5)}")
    p(f"v_mov_b32 v73, {fl(1.0/640)}")
    p(f"v_fma_f32 v72, v72, v73, {s(S_T2)}")
    p("v_rsq_f32 v72, v72")
    for k in range(40):
        p(f"v_mul_f32 {v(F+k)}, {v(F+k)}, v72")
    for k in range(20):
        p(f"v_cvt_pk_bf16_f32 {v(X+k)}, {v(F+2*k)}, {v(F+2*k+1)}")
    for q in range(10):
        p(f"ds_write_b64 v5, {vr(X+2*q,2)} offset:{2176*q}")
    p("v_lshrrev_b32 v6, 4, v1")
    p("v_bfe_u32 v7, v1, 2, 2")
    p("v_and_b32 v8, 3, v1")
    p("v_lshrrev_b32 v9, 1, v8")
    p("v_lshl_add_u32 v9, v6, 1, v9")
    p(f"s_mul_i32 {s(S_T1)}, {s(S_WAVE)}, 40")
    p(f"v_add_u32 v9, {s(S_T1)}, v9")
    p("v_mul_u32_u24 v9, 136, v9")
    p("v_and_b32 v70, 1, v8")
    p("v_lshl_add_u32 v70, v70, 3, v7")
    p("v_lshl_add_u32 v9, v70, 3, v9")
    p("v_lshrrev_b32 v70, 1, v7")
    p("v_lshl_add_u32 v70, v6, 1, v70")
    p("v_lshlrev_b32 v70, 7, v70")
    p("v_lshl_add_u32 v70, v8, 5, v70")
    p("v_and_b32 v71, 1, v7")
    p("v_lshl_add_u32 v70, v71, 4, v70")
    p(f"s_mul_i32 {s(S_T0)}, s2, 20480")
    p(f"s_mul_i32 {s(S_T1)}, {s(S_WAVE)}, 5120")
    p(f"s_add_u32 {s(S_T0)}, {s(S_T0)}, {s(S_T1)}")
    if WS_NF: p(f"s_add_u32 {s(S_T0)}, {s(S_T0)}, {WS_NF}")
    p(f"s_add_u32 {s(S_T1)}, {s(S_T0)}, 4096")
    p("s_waitcnt lgkmcnt(0)")
    p("s_barrier")
    for it in range(5):
        p(f"ds_read_b64_tr_b16 {vr(X+4*it,2)}, v9 offset:{1088*it}")
        p(f"ds_read_b64_tr_b16 {vr(X+4*it+2,2)}, v9 offset:{1088*it+32}")
    for it in range(5):
        p(f"s_waitcnt lgkmcnt({8-2*it})")
        if it < 4: p(f"buffer_store_dwordx4 {vr(X+4*it,4)}, v70, {sr(SRD_WS,4)}, {s(S_T0)} offen offset:{1024*it}{SC}")
        else:      p(f"buffer_store_dwordx4 {vr(X+4*it,4)}, v70, {sr(SRD_WS,4)}, {s(S_T1)} offen{SC}")

def modtask(p):
    p.c("---- mod ----")
    srds(p, [(SRD_A, 'wmod'), (SRD_B, 'c')])
    S0, S1, S2 = 32, 33, 34
    p(f"s_sub_u32 {s(S0)}, s2, 136")
    p(f"s_lshr_b32 {s(S1)}, {s(S0)}, 1")
    p(f"s_and_b32 {s(S0)}, {s(S0)}, 1")
    p(f"s_mul_i32 {s(S2)}, {s(S0)}, 320")
    p(f"s_mul_i32 {s(S_T0)}, {s(S_WAVE)}, 80")
    p(f"s_add_u32 {s(S2)}, {s(S2)}, {s(S_T0)}")
    p(f"s_lshl_b32 {s(S_T1)}, {s(S2)}, 1")
    p(f"s_mul_i32 {s(S_T0)}, {s(S2)}, 7680")
    p(f"s_lshl_b32 {s(S_T2)}, {s(S1)}, 7")
    p(f"s_add_u32 {s(S_T0)}, {s(S_T0)}, {s(S_T2)}")
    p("v_lshrrev_b32 v2, 3, v1")
    p("v_and_b32 v3, 7, v1")
    p("v_mul_u32_u24 v4, 7680, v2")
    p("v_lshl_add_u32 v4, v3, 4, v4")
    p("v_lshlrev_b32 v5, 1, v2")
    Cc = 10; W = 20; ACC = 60; T = 70
    for i in range(10):
        p(f"buffer_load_ushort {v(Cc+i)}, v5, {sr(SRD_B,4)}, {s(S_T1)} offen offset:{16*i}")
    for i in range(10):
        p(f"buffer_load_dwordx4 {vr(W+4*i,4)}, v4, {sr(SRD_A,4)}, {s(S_T0)} offen")
        if i < 9: p(f"s_add_u32 {s(S_T0)}, {s(S_T0)}, {8*7680}")
    p("s_waitcnt vmcnt(10)")
    for i in range(10):
        c = Cc + i
        p(f"v_lshlrev_b32 {v(c)}, 16, {v(c)}")
        p(f"v_mul_f32 {v(T)}, {fl(-LOG2E)}, {v(c)}")
        p(f"v_exp_f32 {v(T)}, {v(T)}")
        p(f"v_add_f32 {v(T)}, 1.0, {v(T)}")
        p(f"v_rcp_f32 {v(T)}, {v(T)}")
        p(f"v_mul_f32 {v(c)}, {v(c)}, {v(T)}")
        p(f"v_cvt_pk_bf16_f32 {v(c)}, {v(c)}, {v(c)}")
        p(f"v_lshlrev_b32 {v(c)}, 16, {v(c)}")
    for i in range(10):
        p(f"s_waitcnt vmcnt({9-i})")
        for k in range(4):
            unpack(p, T, T+1, W+4*i+k)
            if i == 0:
                p(f"v_mul_f32 {v(ACC+2*k)}, {v(Cc)}, {v(T)}")
                p(f"v_mul_f32 {v(ACC+2*k+1)}, {v(Cc)}, {v(T+1)}")
            else:
                p(f"v_fmac_f32 {v(ACC+2*k)}, {v(Cc+i)}, {v(T)}")
                p(f"v_fmac_f32 {v(ACC+2*k+1)}, {v(Cc+i)}, {v(T+1)}")
    for k in range(8):
        p(f"v_add_f32_dpp {v(ACC+k)}, {v(ACC+k)}, {v(ACC+k)} row_ror:8 row_mask:0xf bank_mask:0xf")
    for k in range(8):
        cross_row_sum(p, ACC+k, T + (k & 1))
    p(f"s_lshl_b32 {s(S_T0)}, {s(S_WAVE)}, 8")
    p("v_lshlrev_b32 v6, 5, v3")
    p(f"v_add_u32 v6, {s(S_T0)}, v6")
    p("s_mov_b64 s[36:37], exec")
    p("s_mov_b64 exec, 0xff")
    p(f"ds_write_b128 v6, {vr(ACC,4)}")
    p(f"ds_write_b128 v6, {vr(ACC+4,4)} offset:16")
    p("s_mov_b64 exec, s[36:37]")
    p("s_waitcnt lgkmcnt(0)")
    p("s_barrier")
    p(f"s_cmp_eq_u32 {s(S_WAVE)}, 0")
    lab = p.newlabel('L_modskip')
    p(f"s_cbranch_scc0 {lab}")
    p("v_lshlrev_b32 v6, 2, v1")
    for w in range(4):
        p(f"ds_read_b32 {v(T+w)}, v6 offset:{256*w}")
    p(f"s_mul_i32 {s(S0)}, {s(S0)}, 15360")
    p(f"s_lshl_b32 {s(S1)}, {s(S1)}, 8")
    p(f"s_add_u32 {s(S0)}, {s(S0)}, {s(S1)}")
    p(f"s_add_u32 {s(S0)}, {s(S0)}, {WS_MODP}")
    p("s_waitcnt lgkmcnt(0)")
    p(f"v_add_f32 {v(T)}, {v(T)}, {v(T+1)}")
    p(f"v_add_f32 {v(T+2)}, {v(T+2)}, {v(T+3)}")
    p(f"v_add_f32 {v(T)}, {v(T)}, {v(T+2)}")
    p(f"buffer_store_dword {v(T)}, v6, {sr(SRD_WS,4)}, {s(S0)} offen{SC}")
    p.label(lab)

def phaseA1(p):
    l_mod = p.newlabel('L_mod'); l_done = p.newlabel('L_A1done')
    p("s_cmp_ge_u32 s2, 128")
    p(f"s_cbranch_scc1 {l_mod}")
    ln1(p)
    p(f"s_branch {l_done}")
    p.label(l_mod)
    p("s_cmp_lt_u32 s2, 136")
    p(f"s_cbranch_scc1 {l_done}")
    modtask(p)
    p.label(l_done)
```

```python
from common import *
from phK import KC_STRIDE, KC_BYTES, U_OFF, U_PAD, WSTRIDE, S_G, S_D, S_LB, conv_ids

XR = 200
def rbf(p, r):
    p(f"v_cvt_pk_bf16_f32 {v(r)}, {v(r)}, {v(r)}")
    p(f"v_lshlrev_b32 {v(r)}, 16, {v(r)}")

def conv_xloads(p):
    srds(p, [(SRD_A, 'x')])
    p("v_lshrrev_b32 v2, 4, v0")
    p("v_and_b32 v3, 15, v0")
    p("v_lshl_add_u32 v2, v2, 5, v3")
    p("v_mul_u32_u24 v2, 1280, v2")
    p("v_add_u32 v3, 20480, v2")
    p(f"s_lshl_b32 {s(S_T0)}, {s(S_G)}, 3")
    for it in range(4):
        p(f"buffer_load_dwordx2 {vr(XR+4*it,2)}, v2, {sr(SRD_A,4)}, {s(S_T0)} offen")
        p(f"buffer_load_dwordx2 {vr(XR+4*it+2,2)}, v3, {sr(SRD_A,4)}, {s(S_T0)} offen")
        if it < 3: p(f"s_add_u32 {s(S_T0)}, {s(S_T0)}, {512*1280}")

def conv(p):
    p.c("---- conv ----")
    srds(p, [(SRD_B, 'dskip')])
    SA, C1, GA, DS = 10, 11, 12, 13
    T = 14
    p("v_bfe_u32 v2, v0, 1, 2")
    p(f"s_lshl_b32 {s(S_T0)}, {s(S_G)}, 4")
    p(f"s_add_u32 {s(S_T0)}, {s(S_T0)}, {WS_MODP}")
    p("v_lshlrev_b32 v3, 2, v2")
    p(f"buffer_load_dword {v(SA)}, v3, {sr(SRD_WS,4)}, {s(S_T0)} offen{SC}")
    p(f"buffer_load_dword {v(C1)}, v3, {sr(SRD_WS,4)}, {s(S_T0)} offen offset:2560{SC}")
    p(f"s_add_u32 {s(S_T1)}, {s(S_T0)}, 15360")
    p(f"buffer_load_dword {v(T)}, v3, {sr(SRD_WS,4)}, {s(S_T1)} offen{SC}")
    p(f"buffer_load_dword {v(T+1)}, v3, {sr(SRD_WS,4)}, {s(S_T1)} offen offset:2560{SC}")
    p(f"s_lshl_b32 {s(S_T2)}, {s(S_WAVE)}, 2")
    p(f"v_mov_b32 v4, {s(S_T2)}")
    p(f"s_add_u32 {s(S_T0)}, {s(S_T0)}, 5120")
    p(f"s_add_u32 {s(S_T1)}, {s(S_T1)}, 5120")
    p(f"buffer_load_dword {v(GA)}, v4, {sr(SRD_WS,4)}, {s(S_T0)} offen{SC}")
    p(f"buffer_load_dword {v(T+2)}, v4, {sr(SRD_WS,4)}, {s(S_T1)} offen{SC}")
    p(f"s_lshl_b32 {s(S_T2)}, {s(S_D)}, 1")
    p("v_mov_b32 v4, 0")
    p(f"buffer_load_ushort {v(DS)}, v4, {sr(SRD_B,4)}, {s(S_T2)} offen")
    tk_mod = p.vt()
    NR = 20
    p("v_lshrrev_b32 v5, 3, v0")
    p("v_mul_u32_u24 v6, 20480, v5")
    p("v_and_b32 v7, 7, v0")
    p("v_lshl_add_u32 v6, v7, 4, v6")
    p(f"s_lshl_b32 {s(S_T0)}, {s(S_G)}, 7")
    if WS_NF: p(f"s_add_u32 {s(S_T0)}, {s(S_T0)}, {WS_NF}")
    tks = []
    for it in range(4):
        p(f"buffer_load_dwordx4 {vr(NR+4*it,4)}, v6, {sr(SRD_WS,4)}, {s(S_T0)} offen{SC}")
        tks.append(p.vt())
        if it < 3: p(f"s_add_u32 {s(S_T0)}, {s(S_T0)}, {32*20480}")
    p(f"v_mul_u32_u24 v8, {WSTRIDE}, v2")
    p("v_lshl_add_u32 v8, v5, 5, v8")
    p("v_and_b32 v9, 1, v0")
    p("v_lshl_add_u32 v8, v9, 4, v8")
    p(f"v_add_u32 v8, {U_OFF + U_PAD}, v8")
    for k in range(4): p(f"v_mov_b32 {v(40+k)}, 0")
    p("v_lshlrev_b32 v9, 4, v1")
    p(f"v_add_u32 v9, {s(S_LB)}, v9")
    p("s_mov_b64 s[36:37], exec")
    p("s_mov_b64 exec, 0x3fffffff")
    p(f"ds_write_b128 v9, {vr(40,4)} offset:{U_OFF}")
    p("s_mov_b64 exec, s[36:37]")
    p.wait_vm(tk_mod)
    p(f"v_add_f32 {v(SA)}, {v(SA)}, {v(T)}"); rbf(p, SA)
    p(f"v_add_f32 {v(C1)}, {v(C1)}, {v(T+1)}"); rbf(p, C1)
    p(f"v_add_f32 {v(C1)}, 1.0, {v(C1)}"); rbf(p, C1)
    p(f"v_add_f32 {v(GA)}, {v(GA)}, {v(T+2)}"); rbf(p, GA)
    p(f"v_lshlrev_b32 {v(DS)}, 16, {v(DS)}")
    F = 44
    for it in range(4):
        p.wait_vm(tks[it])
        for k in range(4): unpack(p, F+2*k, F+2*k+1, NR+4*it+k)
        for k in range(8): p(f"v_fma_f32 {v(F+k)}, {v(F+k)}, {v(C1)}, {v(SA)}")
        for k in range(4): p(f"v_cvt_pk_bf16_f32 {v(NR+4*it+k)}, {v(F+2*k)}, {v(F+2*k+1)}")
        p(f"ds_write_b128 v8, {vr(NR+4*it,4)} offset:{1024*it}")
    AA, AB = 4, 5
    p("v_lshrrev_b32 v6, 4, v1")
    p("v_bfe_u32 v7, v1, 2, 2")
    p("v_and_b32 v9, 3, v1")
    p(f"v_mul_u32_u24 {v(AA)}, {KC_STRIDE}, v7")
    p(f"v_lshl_add_u32 {v(AA)}, v9, 3, {v(AA)}")
    p("v_lshlrev_b32 v7, 4, v6")
    p(f"v_sub_u32 {v(AA)}, {v(AA)}, v7")
    p(f"s_add_u32 {s(S_T0)}, {s(S_LB)}, 56")
    p(f"v_add_u32 {v(AA)}, {s(S_T0)}, {v(AA)}")
    p("v_and_b32 v9, 15, v1")
    p(f"v_lshlrev_b32 {v(AB)}, 5, v9")
    p(f"v_add_u32 {v(AB)}, {v(AB)}, v7")
    p(f"s_add_u32 {s(S_T0)}, {s(S_LB)}, {U_OFF + 448}")
    p(f"v_add_u32 {v(AB)}, {s(S_T0)}, {v(AB)}")
    ACC = 160
    for k in range(32): p(f"v_mov_b32 {v(ACC+k)}, 0")
    p("s_waitcnt lgkmcnt(0)")
    p("s_barrier")
    FA = [20, 84]; FB = [52, 116]
    def loads(st):
        out = []
        for J in range(8):
            out.append(f"ds_read_b64_tr_b16 {vr(FA[st]+4*J,2)}, {v(AA)} offset:{8+512*J}")
            out.append(f"ds_read_b64_tr_b16 {vr(FA[st]+4*J+2,2)}, {v(AA)} offset:{512*J}")
            out.append(f"ds_read_b128 {vr(FB[st]+4*J,4)}, {v(AB)} offset:{512*J}")
        return out
    def step_addr():
        return [f"v_add_u32 {v(AA)}, 64, {v(AA)}", f"v_subrev_u32 {v(AB)}, 64, {v(AB)}"]
    def mfmas(st):
        return [f"v_mfma_f32_16x16x32_bf16 {vr(ACC+4*t,4)}, {vr(FA[st]+4*J,4)}, {vr(FB[st]+4*(t-J),4)}, {vr(ACC+4*t,4)}"
                for J in range(8) for t in range(J, 8)]
    for x in loads(0): p(x)
    SCNT = 43
    p(f"s_mov_b32 {s(SCNT)}, 0")
    lab = p.newlabel('L_conv')
    p.loop_begin(lab)
    for st in range(2):
        for x in step_addr(): p(x)
        p("s_waitcnt lgkmcnt(0)")
        for x in interleave(mfmas(st), loads(1-st), per=1.0): p(x)
    p(f"s_add_u32 {s(SCNT)}, {s(SCNT)}, 1")
    p(f"s_cmp_lt_u32 {s(SCNT)}, 4")
    p(f"s_cbranch_scc1 {lab}")
    p.loop_end()
    p("s_waitcnt lgkmcnt(0)")
    p("v_and_b32 v6, 15, v1")
    p("v_lshrrev_b32 v7, 4, v1")
    p("v_lshlrev_b32 v6, 5, v6")
    p("v_lshl_add_u32 v6, v7, 3, v6")
    p(f"s_add_u32 {s(S_T0)}, {s(S_LB)}, {U_OFF + U_PAD}")
    p(f"v_add_u32 v6, {s(S_T0)}, v6")
    H = 20
    for t in range(8): p(f"ds_read_b64 {vr(H+2*t,2)}, v6 offset:{512*t}")
    for t in range(8):
        p(f"s_waitcnt lgkmcnt({min(7-t + t, 15) if False else 7-t})") if t == 0 else None
        if t > 0: p(f"s_waitcnt lgkmcnt({(7-t) + 1})")
        unpack(p, F, F+1, H+2*t); unpack(p, F+2, F+3, H+2*t+1)
        for i in range(4): p(f"v_fma_f32 {v(F+i)}, {v(F+i)}, {v(DS)}, {v(ACC+4*t+i)}")
        for i in range(4): p(f"v_mul_f32 {v(F+i)}, {v(GA)}, {v(F+i)}")
        p(f"v_cvt_pk_bf16_f32 {v(H+2*t)}, {v(F)}, {v(F+1)}")
        p(f"v_cvt_pk_bf16_f32 {v(H+2*t+1)}, {v(F+2)}, {v(F+3)}")
        p(f"ds_write_b64 v6, {vr(H+2*t,2)} offset:{512*t}")
    p("v_lshrrev_b32 v6, 4, v0")
    p("v_bfe_u32 v7, v1, 2, 2")
    p("v_and_b32 v9, 3, v1")
    p(f"v_mul_u32_u24 v8, {WSTRIDE}, v7")
    p("v_lshl_add_u32 v8, v6, 6, v8")
    p("v_lshl_add_u32 v8, v9, 3, v8")
    p(f"v_add_u32 v8, {U_OFF + U_PAD}, v8")
    p("v_mul_u32_u24 v6, 40960, v6")
    p("v_and_b32 v9, 15, v1")
    p("v_lshl_add_u32 v6, v9, 4, v6")
    p(f"s_lshl_b32 {s(S_T0)}, {s(S_G)}, 8")
    p(f"s_add_u32 {s(S_T0)}, {s(S_T0)}, {WS_X1F}")
    p("s_waitcnt lgkmcnt(0)")
    p("s_barrier")
    Y = 20
    for it in range(4):
        for hh in range(2):
            p(f"ds_read_b64_tr_b16 {vr(Y+4*it+2*hh,2)}, v8 offset:{1024*it+32*hh}")
    p("s_waitcnt vmcnt(0)")
    G2 = 52
    for it in range(4):
        p(f"s_waitcnt lgkmcnt({6-2*it})")
        for k in range(4):
            unpack(p, F, F+1, Y+4*it+k); unpack(p, F+2, F+3, XR+4*it+k)
            p(f"v_add_f32 {v(F)}, {v(F)}, {v(F+2)}")
            p(f"v_add_f32 {v(F+1)}, {v(F+1)}, {v(F+3)}")
            p(f"v_cvt_pk_bf16_f32 {v(G2+4*it+k)}, {v(F)}, {v(F+1)}")
        p(f"buffer_store_dwordx4 {vr(G2+4*it,4)}, v6, {sr(SRD_WS,4)}, {s(S_T0)} offen{SC}")
        if it < 3: p(f"s_add_u32 {s(S_T0)}, {s(S_T0)}, {16*40960}")
```

```python
from common import *
import math
S_MT, S_NT, S_PB0, S_CNT, S_T = 44, 45, 46, 47, 48
S_Q = 49
S_SLOT = 50
S_WSRC = 51
S_H2 = 52
S_M0B = 53
S_RSLOT = 54
SLAB = 40960
CWL = 3*SLAB
XF = 10; ACC = [170, 186]; CV = 202; G_ = 218; U_ = 222; A_ = 226
VA, VN, VCV, VH2 = 2, 3, 4, 5
R_, RM_, VC2 = 250, 251, 249
OUT = 252
WR = 0
ST1, ST2 = 16, 20
SRD_W = SRD_A
C1 = -2.0*LOG2E*math.sqrt(2.0/math.pi)
C2 = C1*0.044715

def ids(p):
    p(f"s_and_b32 {s(S_T0)}, s2, 7")
    p(f"s_lshr_b32 {s(S_T1)}, s2, 3")
    p(f"s_and_b32 {s(S_MT)}, {s(S_T0)}, 1")
    p(f"s_lshl_b32 {s(S_MT)}, {s(S_MT)}, 3")
    p(f"s_and_b32 {s(S_T2)}, {s(S_T1)}, 7")
    p(f"s_add_u32 {s(S_MT)}, {s(S_MT)}, {s(S_T2)}")
    p(f"s_lshr_b32 {s(S_T0)}, {s(S_T0)}, 1")
    p(f"s_lshr_b32 {s(S_T1)}, {s(S_T1)}, 3")
    p(f"s_mul_i32 {s(S_PB0)}, {s(S_T0)}, 27")
    p(f"s_mul_i32 {s(S_T2)}, {s(S_T1)}, 7")
    p(f"s_add_u32 {s(S_PB0)}, {s(S_PB0)}, {s(S_T2)}")
    p(f"s_cmp_eq_u32 {s(S_T1)}, 3")
    p(f"s_cselect_b32 {s(S_CNT)}, 6, 7")
    p(f"s_lshl_b32 {s(S_T)}, {s(S_MT)}, 2")
    p(f"s_add_u32 {s(S_T)}, {s(S_T)}, {s(S_WAVE)}")

def dma_slab(group_only=False):
    out = []
    for k in range(10):
        pre = []
        if k == 0:
            pre.append(f"s_add_u32 m0, {s(S_SLOT)}, {s(S_M0B)}")
            pre.append(f"s_mov_b32 {s(S_T0)}, {s(S_WSRC)}")
        elif k % 4 == 0:
            pre.append("s_add_u32 m0, m0, 4096")
            pre.append(f"s_add_u32 {s(S_T0)}, {s(S_T0)}, 4096")
        pre.append(f"buffer_load_dwordx4 v1x16, {sr(SRD_W,4)}, {s(S_T0)} offen offset:{1024*(k%4)}{SC} lds".replace('v1x16', v(6)))
        out.append(pre)
    return out

def advance_slab(p):
    p(f"s_add_u32 {s(S_WSRC)}, {s(S_WSRC)}, {SLAB}")
    p(f"s_add_u32 {s(S_SLOT)}, {s(S_SLOT)}, {SLAB}")
    p(f"s_cmp_eq_u32 {s(S_SLOT)}, {3*SLAB}")
    p(f"s_cselect_b32 {s(S_SLOT)}, 0, {s(S_SLOT)}")

def prefetch(p):
    p.c("---- GEMM1 prefetch ----")
    ids(p)
    p(f"s_mov_b32 {s(SRD_W)}, {s(SRD_WS)}")
    p(f"s_mov_b32 {s(SRD_W+1)}, {s(SRD_WS+1)}")
    p(f"s_mov_b32 {s(SRD_W+2)}, {hex(NB['ws'])}")
    p(f"s_mov_b32 {s(SRD_W+3)}, 0x00020000")
    p("v_lshlrev_b32 v6, 4, v1")
    p(f"s_mul_i32 {s(S_M0B)}, {s(S_WAVE)}, 10240")
    p(f"s_mul_i32 {s(S_WSRC)}, {s(S_PB0)}, {SLAB}")
    p(f"s_add_u32 {s(S_WSRC)}, {s(S_WSRC)}, {s(S_M0B)}")
    p(f"s_add_u32 {s(S_WSRC)}, {s(S_WSRC)}, {WS_WPF}")
    p(f"s_mov_b32 {s(S_SLOT)}, 0")
    for sl in range(3):
        for grp in dma_slab():
            for x in grp: p(x)
        advance_slab(p)
    lab = p.newlabel('L_cw')
    p(f"s_cmp_ge_u32 {s(S_WAVE)}, 2")
    p(f"s_cbranch_scc1 {lab}")
    p(f"s_lshl_b32 {s(S_T0)}, {s(S_PB0)}, 8")
    p(f"s_lshl_b32 {s(S_T1)}, {s(S_WAVE)}, 10")
    p(f"s_add_u32 {s(S_T0)}, {s(S_T0)}, {s(S_T1)}")
    p(f"s_add_u32 {s(S_T0)}, {s(S_T0)}, {WS_CWS}")
    p(f"s_add_u32 m0, {s(S_T1)}, {CWL}")
    p(f"buffer_load_dwordx4 v6, {sr(SRD_WS,4)}, {s(S_T0)} offen{SC} lds")
    p.label(lab)

def epilogue_ops(acc):
    L = []
    for jh in range(2):
        for vec in range(4):
            L.append(('rd', f"ds_read_b128 {vr(CV+4*vec,4)}, {v(VCV)} offset:{64*vec + 32*jh}", f"cv{jh}"))
        L.append(('need', f"cv{jh}"))
        g = lambda i: acc + 4*jh + i
        u = lambda i: acc + 8 + 4*jh + i
        for i in range(4): L.append(f"v_fma_f32 {v(G_+i)}, {v(RM_)}, {v(CV+i)}, {v(CV+4+i)}")
        for i in range(4): L.append(f"v_fma_f32 {v(U_+i)}, {v(RM_)}, {v(CV+8+i)}, {v(CV+12+i)}")
        for i in range(4): L.append(f"v_fma_f32 {v(G_+i)}, {v(R_)}, {v(g(i))}, {v(G_+i)}")
        for i in range(4): L.append(f"v_fma_f32 {v(U_+i)}, {v(R_)}, {v(u(i))}, {v(U_+i)}")
        for i in range(4): L.append(f"v_mul_f32 {v(A_+i)}, {v(G_+i)}, {v(G_+i)}")
        for i in range(4): L.append(f"v_fmaak_f32 {v(A_+i)}, {v(A_+i)}, {v(VC2)}, {fl(C1)}")
        for i in range(4): L.append(f"v_mul_f32 {v(A_+i)}, {v(G_+i)}, {v(A_+i)}")
        for i in range(4): L.append(f"v_exp_f32 {v(A_+i)}, {v(A_+i)}")
        for i in range(4): L.append(f"v_mul_f32 {v(G_+i)}, {v(G_+i)}, {v(U_+i)}")
        for i in range(4): L.append(f"v_add_f32 {v(A_+i)}, 1.0, {v(A_+i)}")
        for i in range(4): L.append(f"v_rcp_f32 {v(A_+i)}, {v(A_+i)}")
        for i in range(4): L.append(f"v_mul_f32 {v(G_+i)}, {v(G_+i)}, {v(A_+i)}")
        L.append(f"v_cvt_pk_bf16_f32 {v(OUT+2*jh)}, {v(G_)}, {v(G_+1)}")
        L.append(f"v_cvt_pk_bf16_f32 {v(OUT+2*jh+1)}, {v(G_+2)}, {v(G_+3)}")
    L.append(f"buffer_store_dwordx4 {vr(OUT,4)}, {v(VH2)}, {sr(SRD_WS,4)}, {s(S_H2)} offen{SC}")
    return L

class LQ:
    def __init__(self, p, init): self.p = p; self.q = list(init)
    def rd(self, text, tag): self.p(text); self.q.append(tag)
    def need(self, tag):
        if tag in self.q:
            last = max(i for i, t in enumerate(self.q) if t == tag)
            n = len(self.q) - 1 - last
            self.p(f"s_waitcnt lgkmcnt({min(n,15)})")
            self.q = self.q[last+1:]

def emit_item(lq, it):
    if isinstance(it, str): lq.p(it)
    elif it[0] == 'rd': lq.rd(it[1], it[2])
    elif it[0] == 'need': lq.need(it[1])

def wread(k, addr):
    return f"ds_read_b128 {ar(WR+4*(k%4),4)}, {v(addr)} offset:{1024*(k%40)}"

def tail_sync(p, lq, vmn):
    p(f"s_waitcnt vmcnt({vmn}) lgkmcnt(0)"); lq.q = []
    p("s_barrier")

def mfma(acc, k, first):
    c = '0' if first else vr(acc,16)
    return f"v_mfma_f32_32x32x16_bf16 {vr(acc,16)}, {ar(WR+4*(k%4),4)}, {vr(XF+4*k,4)}, {c}"

def gemm_pass(p, accn, acco):
    lq = LQ(p, ['w0', 'w1', 'w2'])
    p(f"s_add_u32 {s(S_T1)}, {s(S_Q)}, 2")
    p(f"s_cmp_lt_u32 {s(S_T1)}, {s(S_CNT)}")
    p(f"s_cselect_b32 {s(SRD_W+2)}, {hex(NB['ws'])}, 0")
    ep = epilogue_ops(acco)
    dm = dma_slab()
    nep = len(ep); ei = 0
    for k in range(40):
        lq.need(f"w{k}")
        p(mfma(accn, k, k == 0))
        if k + 3 < 40: lq.rd(wread(k+3, VA), f"w{k+3}")
        if k % 2 == 0 and k < 20:
            for x in dm[k//2]: p(x)
        if k == 20: advance_slab(p)
        if 1 <= k <= 35:
            tgt = int(round(nep * k / 35.0))
            while ei < tgt:
                emit_item(lq, ep[ei]); ei += 1
        if k == 37:
            tail_sync(p, lq, 12)
            lq.rd(wread(0, VN), 'w0')
        if k == 38: lq.rd(wread(1, VN), 'w1')
        if k == 39: lq.rd(wread(2, VN), 'w2')
    assert ei == nep
    pass_end(p)

def pass_end(p):
    p(f"v_mov_b32 {v(VA)}, {v(VN)}")
    p(f"s_add_u32 {s(S_RSLOT)}, {s(S_RSLOT)}, {SLAB}")
    p(f"s_cmp_eq_u32 {s(S_RSLOT)}, {3*SLAB}")
    p(f"s_cselect_b32 {s(S_RSLOT)}, 0, {s(S_RSLOT)}")
    p(f"v_add_u32 {v(VN)}, {s(S_RSLOT)}, v6")
    p(f"s_add_u32 {s(S_Q)}, {s(S_Q)}, 1")

def main(p):
    p.c("---- GEMM1 main ----")
    p(f"s_mul_i32 {s(S_T0)}, {s(S_T)}, 40960")
    p(f"s_add_u32 {s(S_T0)}, {s(S_T0)}, {WS_X1F}")
    for ks in range(40):
        p(f"buffer_load_dwordx4 {vr(XF+4*ks,4)}, v6, {sr(SRD_WS,4)}, {s(S_T0)} offen offset:{1024*(ks%4)}{SC}")
        if ks % 4 == 3 and ks < 39: p(f"s_add_u32 {s(S_T0)}, {s(S_T0)}, 4096")
    p(f"v_mov_b32 {v(VA)}, v6")
    p(f"v_add_u32 {v(VN)}, {SLAB}, v6")
    p(f"s_mov_b32 {s(S_RSLOT)}, {SLAB}")
    p("v_lshrrev_b32 v7, 5, v1")
    p(f"v_lshlrev_b32 {v(VCV)}, 4, v7")
    p(f"v_add_u32 {v(VCV)}, {CWL}, {v(VCV)}")
    p("v_bfe_u32 v8, v1, 4, 1")
    p(f"v_mul_u32_u24 {v(VH2)}, {54*1024}, v8")
    p(f"v_lshl_add_u32 {v(VH2)}, v7, 8, {v(VH2)}")
    p("v_and_b32 v8, 15, v1")
    p(f"v_lshl_add_u32 {v(VH2)}, v8, 4, {v(VH2)}")
    p(f"s_mul_i32 {s(S_H2)}, {s(S_T)}, {2*54*1024}")
    p(f"s_lshl_b32 {s(S_T0)}, {s(S_PB0)}, 9")
    p(f"s_add_u32 {s(S_H2)}, {s(S_H2)}, {s(S_T0)}")
    p(f"s_add_u32 {s(S_H2)}, {s(S_H2)}, {WS_H2F}")
    p(f"v_mov_b32 {v(VC2)}, {fl(C2)}")
    ONE = 8
    p(f"v_mov_b32 v{ONE}, 0x3f803f80")
    p(f"v_mov_b32 v{ONE+1}, 0x3f803f80")
    for k in range(4):
        p(f"v_accvgpr_write_b32 {a(ST1+k)}, 0")
        p(f"v_accvgpr_write_b32 {a(ST2+k)}, 0")
    p("s_waitcnt vmcnt(40)")
    p("s_barrier")
    lq = LQ(p, [])
    for k in range(3): lq.rd(wread(k, VA), f"w{k}")
    for k in range(40):
        x = XF + 4*k
        p(f"s_waitcnt vmcnt({39-k})")
        p(f"v_permlane16_swap_b32 {v(x)}, {v(x+2)}")
        p(f"v_permlane16_swap_b32 {v(x+1)}, {v(x+3)}")
        lq.need(f"w{k}")
        p(f"v_mfma_f32_4x4x4_16b_bf16 {ar(ST1,4)}, {vr(ONE,2)}, {vr(x,2)}, {ar(ST1,4)}")
        p(f"v_mfma_f32_4x4x4_16b_bf16 {ar(ST2,4)}, {vr(x,2)}, {vr(x,2)}, {ar(ST2,4)}")
        p(mfma(ACC[0], k, k == 0))
        p(f"v_mfma_f32_4x4x4_16b_bf16 {ar(ST1,4)}, {vr(ONE,2)}, {vr(x+2,2)}, {ar(ST1,4)}")
        p(f"v_mfma_f32_4x4x4_16b_bf16 {ar(ST2,4)}, {vr(x+2,2)}, {vr(x+2,2)}, {ar(ST2,4)}")
        if k + 3 < 40: lq.rd(wread(k+3, VA), f"w{k+3}")
        if k == 37:
            tail_sync(p, lq, 2)
            lq.rd(wread(0, VN), 'w0')
        if k == 38: lq.rd(wread(1, VN), 'w1')
        if k == 39: lq.rd(wread(2, VN), 'w2')
    T = G_
    p(f"v_accvgpr_read_b32 {v(T)}, {a(ST1)}")
    for k in range(4): p(f"v_accvgpr_read_b32 {v(T+2+k)}, {a(ST2+k)}")
    p("v_and_b32 v7, 3, v1")
    p("v_cmp_eq_u32 vcc, 1, v7")
    p(f"v_cndmask_b32 {v(T+2)}, {v(T+2)}, {v(T+3)}, vcc")
    p("v_cmp_eq_u32 vcc, 2, v7")
    p(f"v_cndmask_b32 {v(T+2)}, {v(T+2)}, {v(T+4)}, vcc")
    p("v_cmp_eq_u32 vcc, 3, v7")
    p(f"v_cndmask_b32 {v(T+2)}, {v(T+2)}, {v(T+5)}, vcc")
    for r in (T, T+2):
        p(f"v_mov_b32 {v(T+6)}, {v(r)}")
        p(f"v_permlane32_swap_b32 {v(T+6)}, {v(r)}")
        p(f"v_add_f32 {v(r)}, {v(r)}, {v(T+6)}")
    p(f"v_mul_f32 {v(T)}, {fl(1.0/640)}, {v(T)}")
    p(f"v_mul_f32 {v(T+2)}, {fl(1.0/640)}, {v(T+2)}")
    p(f"v_fma_f32 {v(T+2)}, -{v(T)}, {v(T)}, {v(T+2)}")
    p(f"v_max_f32 {v(T+2)}, 0, {v(T+2)}")
    p(f"v_add_f32 {v(T+2)}, {fl(1e-5)}, {v(T+2)}")
    p(f"v_rsq_f32 {v(R_)}, {v(T+2)}")
    p(f"v_mul_f32 {v(RM_)}, -{v(T)}, {v(R_)}")
    p(f"s_mov_b32 {s(S_Q)}, 0")
    pass_end(p)
    l_fin0 = p.newlabel('L_g1fin0'); l_fin1 = p.newlabel('L_g1fin1'); lab = p.newlabel('L_g1loop')
    p.loop_begin(lab)
    gemm_pass(p, ACC[1], ACC[0])
    p(f"v_add_u32 {v(VCV)}, 256, {v(VCV)}")
    p(f"s_add_u32 {s(S_H2)}, {s(S_H2)}, 512")
    p(f"s_cmp_ge_u32 {s(S_Q)}, {s(S_CNT)}")
    p(f"s_cbranch_scc1 {l_fin1}")
    gemm_pass(p, ACC[0], ACC[1])
    p(f"v_add_u32 {v(VCV)}, 256, {v(VCV)}")
    p(f"s_add_u32 {s(S_H2)}, {s(S_H2)}, 512")
    p(f"s_cmp_lt_u32 {s(S_Q)}, {s(S_CNT)}")
    p(f"s_cbranch_scc1 {lab}")
    p.loop_end()
    p(f"s_branch {l_fin0}")
    p.label(l_fin1)
    p("s_nop 15")
    for k in range(16): p(f"v_mov_b32 {v(ACC[0]+k)}, {v(ACC[1]+k)}")
    p.label(l_fin0)
    p("s_nop 15")
    lq = LQ(p, ['w0', 'w1', 'w2'])
    for it in epilogue_ops(ACC[0]): emit_item(lq, it)
```

```python
from common import *
S_MT2, S_NT2, S_KS0 = 44, 45, 46
S_HB = 56
X1R = 10; GB = 20; WV = 40; BR = 144; NRING = 7
AACC = 0; WA = 80
def wreg(fi):
    return ar(WA + 4*fi, 4) if fi < 44 else vr(WV + 4*(fi-44), 4)
def rbf(p, r):
    p(f"v_cvt_pk_bf16_f32 {v(r)}, {v(r)}, {v(r)}")
    p(f"v_lshlrev_b32 {v(r)}, 16, {v(r)}")

def prefetch(p):
    p.c("---- GEMM2 prefetch ----")
    p(f"s_and_b32 {s(S_T0)}, s2, 7")
    p(f"s_lshr_b32 {s(S_T1)}, s2, 3")
    p(f"s_lshr_b32 {s(S_MT2)}, {s(S_T0)}, 1")
    p(f"s_lshl_b32 {s(S_MT2)}, {s(S_MT2)}, 3")
    p(f"s_and_b32 {s(S_T2)}, {s(S_T1)}, 7")
    p(f"s_add_u32 {s(S_MT2)}, {s(S_MT2)}, {s(S_T2)}")
    p(f"s_and_b32 {s(S_NT2)}, {s(S_T0)}, 1")
    p(f"s_lshl_b32 {s(S_NT2)}, {s(S_NT2)}, 2")
    p(f"s_lshr_b32 {s(S_T1)}, {s(S_T1)}, 3")
    p(f"s_add_u32 {s(S_NT2)}, {s(S_NT2)}, {s(S_T1)}")
    p(f"s_mul_i32 {s(S_KS0)}, {s(S_WAVE)}, 14")
    p(f"s_cmp_eq_u32 {s(S_WAVE)}, 3")
    p(f"s_cselect_b32 {s(S_T0)}, 1, 0")
    p(f"s_sub_u32 {s(S_KS0)}, {s(S_KS0)}, {s(S_T0)}")
    p("v_lshlrev_b32 v6, 4, v1")
    p("v_lshrrev_b32 v7, 4, v1")
    p("v_lshlrev_b32 v2, 4, v7")
    p(f"s_mul_i32 {s(S_T0)}, {s(S_NT2)}, 320")
    p(f"s_add_u32 {s(S_T0)}, {s(S_T0)}, {WS_MODP + 12800}")
    p(f"s_add_u32 {s(S_T1)}, {s(S_T0)}, 15360")
    TG = BR
    for j in range(5):
        p(f"buffer_load_dwordx4 {vr(GB+4*j,4)}, v2, {sr(SRD_WS,4)}, {s(S_T0)} offen offset:{64*j}{SC}")
        p(f"buffer_load_dwordx4 {vr(TG+4*j,4)}, v2, {sr(SRD_WS,4)}, {s(S_T1)} offen offset:{64*j}{SC}")
    tk = p.vt()
    p("v_and_b32 v8, 15, v1")
    p("v_lshlrev_b32 v3, 8, v7")
    p("v_lshl_add_u32 v3, v8, 4, v3")
    p(f"s_lshl_b32 {s(S_T0)}, {s(S_MT2)}, 1")
    p(f"s_lshr_b32 {s(S_T1)}, {s(S_WAVE)}, 1")
    p(f"s_add_u32 {s(S_T0)}, {s(S_T0)}, {s(S_T1)}")
    p(f"s_mul_i32 {s(S_T0)}, {s(S_T0)}, 40960")
    p(f"s_mul_i32 {s(S_T1)}, {s(S_NT2)}, {20*256}")
    p(f"s_add_u32 {s(S_T0)}, {s(S_T0)}, {s(S_T1)}")
    p(f"s_and_b32 {s(S_T1)}, {s(S_WAVE)}, 1")
    p(f"s_lshl_b32 {s(S_T1)}, {s(S_T1)}, 3")
    p(f"s_add_u32 {s(S_T0)}, {s(S_T0)}, {s(S_T1)}")
    p(f"s_add_u32 {s(S_T0)}, {s(S_T0)}, {WS_X1F}")
    for j in range(5):
        if j == 4: p(f"s_add_u32 {s(S_T0)}, {s(S_T0)}, 4096")
        p(f"buffer_load_dwordx2 {vr(X1R+2*j,2)}, v3, {sr(SRD_WS,4)}, {s(S_T0)} offen offset:{1024*(j%4)}{SC}")
    for j in range(5):
        p(f"s_mul_i32 {s(S_T0)}, {s(S_NT2)}, 5")
        p(f"s_add_u32 {s(S_T0)}, {s(S_T0)}, {j}")
        p(f"s_mul_i32 {s(S_T0)}, {s(S_T0)}, 54")
        p(f"s_add_u32 {s(S_T0)}, {s(S_T0)}, {s(S_KS0)}")
        p(f"s_lshl_b32 {s(S_T0)}, {s(S_T0)}, 10")
        p(f"s_add_u32 {s(S_T0)}, {s(S_T0)}, {WS_WDF}")
        for k in range(14):
            if k % 4 == 0 and k > 0: p(f"s_add_u32 {s(S_T0)}, {s(S_T0)}, 4096")
            p(f"buffer_load_dwordx4 {wreg(5*k+j)}, v6, {sr(SRD_WS,4)}, {s(S_T0)} offen offset:{1024*(k%4)}{SC}")
        if j == 0:
            p.wait_vm(tk)
            for r in range(20):
                p(f"v_add_f32 {v(GB+r)}, {v(GB+r)}, {v(TG+r)}"); rbf(p, GB+r)
    for tb in range(4):
        p(f"s_lshl_b32 {s(S_T0)}, {s(S_MT2)}, 2")
        p(f"s_add_u32 {s(S_T0)}, {s(S_T0)}, {tb}")
        p(f"s_mul_i32 {s(S_T0)}, {s(S_T0)}, 54")
        p(f"s_add_u32 {s(S_T0)}, {s(S_T0)}, {s(S_KS0)}")
        p(f"s_lshl_b32 {s(S_T0)}, {s(S_T0)}, 10")
        p(f"s_add_u32 {s(S_HB+tb)}, {s(S_T0)}, {WS_H2F}")

def main(p):
    p.c("---- GEMM2 main ----")
    srds(p, [(SRD_A, 'out')])
    def hload(ks):
        out = []
        for tb in range(4):
            out.append(f"buffer_load_dwordx4 {vr(BR+16*(ks%NRING)+4*tb,4)}, v6, {sr(SRD_WS,4)}, {s(S_HB+tb)} offen offset:{1024*(ks%4)}{SC}")
            if ks % 4 == 3: out.append(f"s_add_u32 {s(S_HB+tb)}, {s(S_HB+tb)}, 4096")
        return out
    for ks in range(NRING):
        for x in hload(ks): p(x)
    lab_skip = p.newlabel('L_g2skip')
    for ks in range(14):
        last_issued = min(ks + NRING - 1, 13)
        if ks == 13:
            p(f"s_cmp_ge_u32 {s(S_WAVE)}, 2")
            p(f"s_cbranch_scc1 {lab_skip}")
        p(f"s_waitcnt vmcnt({4*(last_issued-ks)})")
        mm = []
        for j in range(5):
            for tb in range(4):
                d = ar(AACC + 4*(4*j+tb), 4)
                c = '0' if ks == 0 else d
                mm.append(f"v_mfma_f32_16x16x32_bf16 {d}, {wreg(5*ks+j)}, {vr(BR+16*(ks%NRING)+4*tb,4)}, {c}")
        for x in mm: p(x)
        if ks + NRING < 14:
            for x in hload(ks + NRING): p(x)
    p.label(lab_skip)
    p("s_waitcnt vmcnt(0)")
    p(f"s_mul_i32 {s(S_T0)}, {s(S_WAVE)}, 20480")
    p(f"v_add_u32 v2, {s(S_T0)}, v6")
    p("s_nop 7")
    for j in range(5):
        for tb in range(4):
            p(f"ds_write_b128 v2, {ar(AACC + 4*(4*j+tb), 4)} offset:{(tb*5+j)*1024}")
    p(f"s_mul_i32 {s(S_T0)}, {s(S_WAVE)}, 5120")
    p(f"v_add_u32 v2, {s(S_T0)}, v6")
    p("v_add_u32 v4, 40960, v2")
    p("v_and_b32 v8, 15, v1")
    p("v_mul_u32_u24 v5, 1280, v8")
    p("v_lshl_add_u32 v5, v7, 3, v5")
    p(f"s_lshl_b32 {s(S_T0)}, {s(S_MT2)}, 2")
    p(f"s_add_u32 {s(S_T0)}, {s(S_T0)}, {s(S_WAVE)}")
    p(f"s_mul_i32 {s(S_T0)}, {s(S_T0)}, {16*1280}")
    p(f"s_mul_i32 {s(S_T1)}, {s(S_NT2)}, 160")
    p(f"s_add_u32 {s(S_T0)}, {s(S_T0)}, {s(S_T1)}")
    p("s_waitcnt lgkmcnt(0)")
    p("s_barrier")
    RD = 40
    for j in range(5):
        for w in range(4):
            base = 2 if w < 2 else 4
            p(f"ds_read_b128 {vr(RD+16*j+4*w,4)}, {v(base)} offset:{(w%2)*20480 + j*1024}")
    F = 130
    for j in range(5):
        p(f"s_waitcnt lgkmcnt({min(15, 4*(4-j))})")
        r = RD + 16*j
        for i in range(4):
            p(f"v_add_f32 {v(r+i)}, {v(r+i)}, {v(r+4+i)}")
            p(f"v_add_f32 {v(r+8+i)}, {v(r+8+i)}, {v(r+12+i)}")
        for i in range(4): p(f"v_add_f32 {v(r+i)}, {v(r+i)}, {v(r+8+i)}")
        unpack(p, F, F+1, X1R+2*j); unpack(p, F+2, F+3, X1R+2*j+1)
        for i in range(4): p(f"v_fma_f32 {v(F+i)}, {v(GB+4*j+i)}, {v(r+i)}, {v(F+i)}")
        p(f"v_cvt_pk_bf16_f32 {v(r)}, {v(F)}, {v(F+1)}")
        p(f"v_cvt_pk_bf16_f32 {v(r+1)}, {v(F+2)}, {v(F+3)}")
        p(f"buffer_store_dwordx2 {vr(r,2)}, v5, {sr(SRD_A,4)}, {s(S_T0)} offen offset:{32*j}")
```

```python
from common import *
import math
KC_STRIDE = 4160
KC_BYTES = 4*KC_STRIDE
U_OFF = KC_BYTES
U_PAD = 480
U_BYTES = U_PAD + 4096
WSTRIDE = KC_BYTES + U_BYTES
S_G = 40
S_D = 41
S_LB = 42

def conv_ids(p):
    p(f"s_and_b32 {s(S_G)}, s2, 7")
    p(f"s_mul_i32 {s(S_G)}, {s(S_G)}, 20")
    p(f"s_lshr_b32 {s(S_T0)}, s2, 3")
    p(f"s_add_u32 {s(S_G)}, {s(S_G)}, {s(S_T0)}")
    p(f"s_lshl_b32 {s(S_D)}, {s(S_G)}, 2")
    p(f"s_add_u32 {s(S_D)}, {s(S_D)}, {s(S_WAVE)}")
    p(f"s_mul_i32 {s(S_LB)}, {s(S_WAVE)}, {WSTRIDE}")

def cmul(dst, x, y, t):
    return [f"v_pk_mul_f32 {vr(t,2)}, {vr(x,2)}, {vr(y,2)} op_sel:[0,0] op_sel_hi:[0,1]",
            f"v_pk_fma_f32 {vr(dst,2)}, {vr(x,2)}, {vr(y,2)}, {vr(t,2)} op_sel:[1,1,0] op_sel_hi:[1,0,1] neg_lo:[1,0,0]"]

def kgen(p):
    p.c("---- Kgen ----")
    tick(p, 0)
    conv_ids(p)
    srds(p, [(SRD_A, 'logA'), (SRD_B, 'Aim'), (SRD_C, 'Cre'), (SRD_D, 'Cim'), (SRD_E, 'logdt')])
    IN = 10
    DT = 18
    p(f"s_lshl_b32 {s(S_T0)}, {s(S_D)}, 8")
    p(f"s_lshl_b32 {s(S_T1)}, {s(S_D)}, 1")
    p("v_lshlrev_b32 v2, 1, v1")
    p("v_mov_b32 v3, 0")
    p(f"buffer_load_ushort {v(DT)}, v3, {sr(SRD_E,4)}, {s(S_T1)} offen")
    for ps in range(2):
        for k, srd in enumerate([SRD_A, SRD_B, SRD_C, SRD_D]):
            p(f"buffer_load_ushort {v(IN+4*ps+k)}, v2, {sr(srd,4)}, {s(S_T0)} offen offset:{128*ps}")
    AW = 20
    p("v_lshrrev_b32 v4, 2, v1")
    p("v_and_b32 v5, 3, v1")
    p("v_lshlrev_b32 v5, 2, v5")
    p(f"v_add_u32 v5, {s(S_LB)}, v5")
    for x in range(16):
        p(f"v_xor_b32 v6, {x}, v4")
        p(f"v_lshl_add_u32 {v(AW+x)}, v6, 4, v5")
    AR = 36
    p("v_and_b32 v4, 15, v1")
    p("v_lshrrev_b32 v5, 4, v1")
    p("v_lshlrev_b32 v7, 8, v4")
    p(f"v_add_u32 v7, {s(S_LB)}, v7")
    for q in range(4):
        p(f"v_add_u32 v6, {4*q}, v5")
        p("v_xor_b32 v6, v6, v4")
        p(f"v_lshl_add_u32 {v(AR+q)}, v6, 4, v7")
    ACC = 40
    for k in range(12): p(f"v_mov_b32 {v(ACC+k)}, 0")
    p("s_waitcnt vmcnt(8)")
    p(f"v_lshlrev_b32 {v(DT)}, 16, {v(DT)}")
    p(f"v_mul_f32 {v(DT)}, {fl(LOG2E)}, {v(DT)}")
    p(f"v_exp_f32 {v(DT)}, {v(DT)}")
    p(f"v_cvt_pk_bf16_f32 {v(DT)}, {v(DT)}, {v(DT)}")
    p(f"v_lshlrev_b32 {v(DT)}, 16, {v(DT)}")
    p("s_waitcnt vmcnt(0)")
    for k in range(8): p(f"v_lshlrev_b32 {v(IN+k)}, 16, {v(IN+k)}")
    SCNT = 43
    p(f"s_mov_b32 {s(SCNT)}, 0")
    Z = 52
    def z(b): return Z + 2*(b-1)
    Z8 = 66; E1 = 68; EC = 70; EN = 72; VC = 74; VN = 76; T1 = 78; T2 = 80; T3 = 82; PR = 84
    AL = 86
    PK = 88
    FR = 96
    lab = p.newlabel('L_kpass')
    p.loop_begin(lab)
    p(f"v_mul_f32 {v(T1)}, {fl(LOG2E)}, {v(IN)}")
    p(f"v_exp_f32 {v(T1)}, {v(T1)}")
    p(f"v_cvt_pk_bf16_f32 {v(T1)}, {v(T1)}, {v(T1)}")
    p(f"v_lshlrev_b32 {v(T1)}, 16, {v(T1)}")
    p(f"v_mul_f32 {v(T1)}, {v(T1)}, {v(DT)}")
    p(f"v_mul_f32 {v(AL)}, {fl(-LOG2E)}, {v(T1)}")
    p(f"v_mul_f32 {v(T1)}, {v(IN+1)}, {v(DT)}")
    p(f"v_mul_f32 {v(AL+1)}, {fl(1.0/(2*math.pi))}, {v(T1)}")
    p(f"v_mul_f32 {v(VC)}, {v(IN+2)}, {v(DT)}")
    p(f"v_mul_f32 {v(VC+1)}, {v(IN+3)}, {v(DT)}")
    p(f"v_add_f32 {v(VC)}, {v(VC)}, {v(VC)}")
    p(f"v_add_f32 {v(VC+1)}, {v(VC+1)}, {v(VC+1)}")
    for dst, pw in [(z(1), 1.0), (Z8, 8.0), (E1, 128.0)]:
        p(f"v_mul_f32 {v(T1)}, {fl(pw)}, {v(AL)}")
        p(f"v_mul_f32 {v(T2)}, {fl(pw)}, {v(AL+1)}")
        p(f"v_exp_f32 {v(T1)}, {v(T1)}")
        p(f"v_fract_f32 {v(T2)}, {v(T2)}")
        p(f"v_cos_f32 {v(T3)}, {v(T2)}")
        p(f"v_sin_f32 {v(T3+1)}, {v(T2)}")
        p(f"v_mul_f32 {v(dst)}, {v(T1)}, {v(T3)}")
        p(f"v_mul_f32 {v(dst+1)}, {v(T1)}, {v(T3+1)}")
    pkc = [0, 0]
    def wr(e, r, neg):
        pool = 1 if neg else 0
        t = PK + 2*pool + (pkc[pool] & 1); pkc[pool] += 1
        sign = '-' if neg else ''
        return [f"v_cvt_pk_bf16_f32 {v(t)}, {v(r)}, {sign}{v(r+1)}",
                f"ds_write_b32 {v(AW + (e & 15))}, {v(t)} offset:{256*e}"]
    A = []
    A += cmul(z(2), z(1), z(1), T1)
    A += cmul(z(3), z(2), z(1), T2)
    A += cmul(z(4), z(2), z(2), T1)
    A += cmul(z(5), z(4), z(1), T2)
    A += cmul(z(6), z(3), z(3), T1)
    A += cmul(z(7), z(4), z(3), T2)
    for x in A: p(x)
    B = []
    cur, nxt = VC, VN
    for j in range(16):
        B += wr(j, cur, False)
        if j < 15:
            B += cmul(nxt, cur, Z8, T3)
            cur, nxt = nxt, cur
    Wl = []
    Wl += [f"v_mov_b32 {v(PK+3)}, 0x3f80", f"ds_write_b32 {v(AW+0)}, {v(PK+3)} offset:{256*16}"]
    for b in range(1, 8): Wl += wr(16+b, z(b), True)
    Wl += wr(16+8, E1, True)
    for b in range(1, 8):
        Wl += cmul(PR, E1, z(b), T1); Wl += wr(16+8+b, PR, True)
    ecur, enxt = EC, EN
    Wl += cmul(ecur, E1, E1, T2)
    for al in range(2, 17):
        if al in (2, 3):
            base = 32 + 4*(al-2)
            Wl += wr(base, ecur, True)
            for k, b in enumerate((2, 4, 6)):
                Wl += cmul(PR, ecur, z(b), T1); Wl += wr(base+1+k, PR, True)
        elif al in (4, 5, 6, 7):
            base = 32 + 8 + 2*(al-4)
            Wl += wr(base, ecur, True)
            Wl += cmul(PR, ecur, z(4), T1); Wl += wr(base+1, PR, True)
        else:
            Wl += wr(48 + (al-8), ecur, True)
        if al < 16:
            Wl += cmul(enxt, ecur, E1, T2)
            ecur, enxt = enxt, ecur
    seq = interleave(Wl, B)
    for x in seq: p(x)
    for q in range(4):
        for tb in range(4):
            p(f"ds_read_b128 {vr(FR+16*q+4*tb,4)}, {v(AR+q)} offset:{4096*tb}")
    for q in range(4):
        p(f"s_waitcnt lgkmcnt({12-4*q})")
        for t in range(3):
            p(f"v_mfma_f32_16x16x32_bf16 {vr(ACC+4*t,4)}, {vr(FR+16*q+4*(t+1),4)}, {vr(FR+16*q,4)}, {vr(ACC+4*t,4)}")
    for k in range(4): p(f"v_mov_b32 {v(IN+k)}, {v(IN+4+k)}")
    p(f"s_add_u32 {s(SCNT)}, {s(SCNT)}, 1")
    p(f"s_cmp_lt_u32 {s(SCNT)}, 2")
    p(f"s_cbranch_scc1 {lab}")
    p.loop_end()
    tick(p, 1)
    p("v_and_b32 v4, 15, v1")
    p("v_lshrrev_b32 v5, 4, v1")
    p(f"s_add_u32 {s(S_T0)}, {s(S_LB)}, {U_OFF}")
    p("v_and_b32 v6, 1, v5")
    p("v_lshrrev_b32 v7, 1, v5")
    p("v_lshlrev_b32 v8, 4, v4")
    p("v_lshl_add_u32 v8, v6, 3, v8")
    p("v_lshl_add_u32 v8, v7, 8, v8")
    p(f"v_add_u32 v8, {s(S_T0)}, v8")
    p("v_lshlrev_b32 v9, 2, v4")
    p("v_lshlrev_b32 v2, 1, v4")
    p("v_cmp_gt_u32 vcc, 2, v5")
    p("v_cndmask_b32 v9, v2, v9, vcc")
    p("v_lshl_add_u32 v9, v5, 6, v9")
    p("v_add_u32 v9, 256, v9")
    p("v_mov_b32 v2, 32")
    p("v_cndmask_b32 v2, v2, 2, vcc" if False else "v_mov_b32 v3, 2")
    p("v_cndmask_b32 v2, v2, v3, vcc")
    p("v_add_u32 v2, v2, v9")
    p("v_lshlrev_b32 v9, 1, v9")
    p("v_lshlrev_b32 v2, 1, v2")
    p(f"v_add_u32 v9, {s(S_T0)}, v9")
    p(f"v_add_u32 v2, {s(S_T0)}, v2")
    p("v_lshl_add_u32 v3, v5, 6, v4")
    p("v_lshlrev_b32 v3, 1, v3")
    p(f"s_add_u32 {s(S_T1)}, {s(S_T0)}, 1024")
    p(f"v_add_u32 v3, {s(S_T1)}, v3")
    O = 60
    p(f"v_cvt_pk_bf16_f32 {v(O)}, {v(ACC)}, {v(ACC+1)}")
    p(f"v_cvt_pk_bf16_f32 {v(O+1)}, {v(ACC+2)}, {v(ACC+3)}")
    p(f"ds_write_b64 v8, {vr(O,2)}")
    p(f"v_cvt_pk_bf16_f32 {v(O+2)}, {v(ACC+4)}, {v(ACC+5)}")
    p(f"v_cvt_pk_bf16_f32 {v(O+3)}, {v(ACC+6)}, {v(ACC+7)}")
    p(f"ds_write_b32 v9, {v(O+2)}")
    p(f"ds_write_b32 v2, {v(O+3)}")
    for i in range(4):
        p(f"v_cvt_pk_bf16_f32 {v(O+4+i)}, {v(ACC+8+i)}, {v(ACC+8+i)}")
        p(f"ds_write_b16 v3, {v(O+4+i)} offset:{32*i}")
    for k in range(4): p(f"v_mov_b32 {v(O+k)}, 0")
    p("v_lshrrev_b32 v4, 1, v1")
    p(f"v_mul_u32_u24 v4, {KC_STRIDE}, v4")
    p("v_and_b32 v5, 1, v1")
    p("v_lshl_add_u32 v4, v5, 4, v4")
    p(f"v_add_u32 v4, {s(S_LB)}, v4")
    p("s_mov_b64 s[36:37], exec")
    p("s_mov_b64 exec, 0xff")
    p(f"ds_write_b128 v4, {vr(O,4)}")
    p("s_mov_b64 exec, s[36:37]")
    p("v_lshlrev_b32 v8, 4, v1")
    p(f"s_add_u32 {s(S_T1)}, {s(S_LB)}, 32")
    p(f"v_add_u32 v8, {s(S_T1)}, v8")
    Dd = 64; Oo = 68; C1 = 72; C2 = 76; C3 = 80; P2 = 84; SEL = 85
    SC2, SC3 = 44, 45
    p(f"s_mov_b32 {s(SC2)}, 0"); p(f"s_mov_b32 {s(SC3)}, 0")
    LL, HH, HL, ID, S0ID, S0LL = 0x01000100, 0x03020302, 0x05040302, 0x03020100, 0x07060504, 0x05040504
    def copies(it):
        p(f"v_mov_b32 {v(C2)}, {s(SC3)}")
        p(f"v_mov_b32 {v(P2)}, {s(SC2)}")
        p(f"ds_write_b128 v8, {vr(Oo,4)} offset:{1024*it}")
        p(f"v_mov_b32_dpp {v(C2)}, {v(Oo+3)} wave_shr:1 row_mask:0xf bank_mask:0xf")
        p(f"v_mov_b32_dpp {v(P2)}, {v(Oo+2)} wave_shr:1 row_mask:0xf bank_mask:0xf")
        if it < 3:
            p(f"v_readlane_b32 {s(SC3)}, {v(Oo+3)}, 63")
            p(f"v_readlane_b32 {s(SC2)}, {v(Oo+2)}, 63")
        for k in range(3): p(f"v_mov_b32 {v(C2+1+k)}, {v(Oo+k)}")
        p(f"v_alignbit_b32 {v(C1)}, {v(Oo)}, {v(C2)}, 16")
        for k in range(1, 4): p(f"v_alignbit_b32 {v(C1+k)}, {v(Oo+k)}, {v(Oo+k-1)}, 16")
        p(f"v_alignbit_b32 {v(C3)}, {v(C2)}, {v(P2)}, 16")
        for k in range(3): p(f"v_mov_b32 {v(C3+1+k)}, {v(C1+k)}")
        p(f"ds_write_b128 v8, {vr(C2,4)} offset:{1024*it + 2*KC_STRIDE}")
        p(f"ds_write_b128 v8, {vr(C1,4)} offset:{1024*it + KC_STRIDE}")
        p(f"ds_write_b128 v8, {vr(C3,4)} offset:{1024*it + 3*KC_STRIDE}")
    p("v_lshlrev_b32 v4, 4, v1")
    p("v_lshlrev_b32 v5, 3, v1")
    p("v_add_u32 v5, 256, v5")
    p("v_cmp_gt_u32 vcc, 32, v1")
    p("v_cndmask_b32 v4, v5, v4, vcc")
    p(f"v_add_u32 v4, {s(S_T0)}, v4")
    p(f"ds_read_b64 {vr(Dd,2)}, v4")
    p(f"ds_read_b64 {vr(Dd+2,2)}, v4 offset:8")
    def selv(r, lo, hi):
        p(f"v_mov_b32 {v(r)}, {hex(hi)}")
        p(f"v_mov_b32 v5, {hex(lo)}")
        p(f"v_cndmask_b32 {v(r)}, {v(r)}, v5, vcc")
    selv(SEL, ID, LL); selv(SEL+1, S0ID, HL); selv(SEL+2, S0ID, LL)
    p(f"s_mov_b32 {s(S_T2)}, {hex(HL)}")
    p("s_waitcnt lgkmcnt(0)")
    p(f"v_perm_b32 {v(Oo)}, {v(Dd)}, {v(Dd)}, {v(SEL)}")
    p(f"v_perm_b32 {v(Oo+1)}, {v(Dd+1)}, {v(Dd)}, {v(SEL+1)}")
    p(f"v_perm_b32 {v(Oo+2)}, {v(Dd+2)}, {v(Dd+1)}, {v(SEL+2)}")
    p(f"v_perm_b32 {v(Oo+3)}, {v(Dd+2)}, {v(Dd+1)}, {s(S_T2)}")
    p(f"v_cndmask_b32 {v(Oo+3)}, {v(Oo+3)}, {v(Dd+3)}, vcc")
    copies(0)
    p("v_lshlrev_b32 v4, 2, v1")
    p(f"s_add_u32 {s(S_T1)}, {s(S_T0)}, 768")
    p(f"v_add_u32 v4, {s(S_T1)}, v4")
    p(f"ds_read2_b32 {vr(Dd,2)}, v4 offset0:0 offset1:1")
    p(f"s_mov_b32 {s(S_T1)}, {hex(LL)}")
    p(f"s_mov_b32 {s(S_T2)}, {hex(HH)}")
    p("s_waitcnt lgkmcnt(0)")
    p(f"v_perm_b32 {v(Oo)}, {v(Dd)}, {v(Dd)}, {s(S_T1)}")
    p(f"v_mov_b32 {v(Oo+1)}, {v(Dd)}")
    p(f"v_perm_b32 {v(Oo+2)}, {v(Dd)}, {v(Dd)}, {s(S_T2)}")
    p(f"v_perm_b32 {v(Oo+3)}, {v(Dd+1)}, {v(Dd+1)}, {s(S_T1)}")
    copies(1)
    p("v_lshrrev_b32 v4, 1, v1")
    p("v_lshlrev_b32 v4, 2, v4")
    p(f"s_add_u32 {s(S_T1)}, {s(S_T0)}, 1024")
    p(f"v_add_u32 v4, {s(S_T1)}, v4")
    p("v_and_b32 v5, 1, v1")
    p("v_cmp_eq_u32 vcc, 0, v5")
    selv(SEL, LL, HH); selv(SEL+1, ID, S0LL); selv(SEL+2, HH, S0LL)
    for it in (2, 3):
        p(f"ds_read2_b32 {vr(Dd,2)}, v4 offset0:{32*(it-2)} offset1:{32*(it-2)+1}")
        p("s_waitcnt lgkmcnt(0)")
        p(f"v_perm_b32 {v(Oo)}, {v(Dd)}, {v(Dd)}, {v(SEL)}")
        p(f"v_mov_b32 {v(Oo+1)}, {v(Oo)}")
        p(f"v_perm_b32 {v(Oo+2)}, {v(Dd+1)}, {v(Dd)}, {v(SEL+1)}")
        p(f"v_perm_b32 {v(Oo+3)}, {v(Dd+1)}, {v(Dd)}, {v(SEL+2)}")
        copies(it)

def kdump(p):
    p("s_waitcnt lgkmcnt(0)")
    p(f"s_mul_i32 {s(S_T0)}, {s(S_D)}, {KC_BYTES}")
    p(f"s_add_u32 {s(S_T0)}, {s(S_T0)}, {WS_H2F}")
    p("v_lshlrev_b32 v4, 4, v1")
    p(f"v_add_u32 v5, {s(S_LB)}, v4")
    for k in range(17):
        n = 1024*k
        p(f"v_add_u32 v6, {n}, v4")
        p(f"ds_read_b128 {vr(12,4)}, v5 offset:{n}")
        p("s_waitcnt lgkmcnt(0)")
        p(f"v_cmp_gt_u32 vcc, {KC_BYTES}, v6")
        p("s_and_saveexec_b64 s[36:37], vcc")
        p(f"buffer_store_dwordx4 {vr(12,4)}, v6, {sr(SRD_WS,4)}, {s(S_T0)} offen")
        p("s_mov_b64 exec, s[36:37]")
        p("s_waitcnt vmcnt(0)")
```

```python
from common import *

def rbf(p, r):
    p(f"v_cvt_pk_bf16_f32 {v(r)}, {v(r)}, {v(r)}")
    p(f"v_lshlrev_b32 {v(r)}, 16, {v(r)}")

S_M, S_CG = 44, 45
WT_BASE = 8192
def wprep_dma(p):
    p.c("---- W' prep: DMA ----")
    p(f"s_sub_u32 {s(S_CG)}, s2, 160")
    p(f"s_and_b32 {s(S_M)}, {s(S_CG)}, 1")
    p(f"s_lshr_b32 {s(S_CG)}, {s(S_CG)}, 1")
    p(f"s_load_dwordx2 s[46:47], s[0:1], {KA['Wg']}")
    p(f"s_load_dwordx2 s[48:49], s[0:1], {KA['Wu']}")
    p("s_waitcnt lgkmcnt(0)")
    p(f"s_cmp_eq_u32 {s(S_M)}, 0")
    p(f"s_cselect_b32 {s(SRD_A)}, s46, s48")
    p(f"s_cselect_b32 {s(SRD_A+1)}, s47, s49")
    finish_srd(p, SRD_A, 'Wg')
    p("v_lshrrev_b32 v2, 3, v1")
    p("v_mul_u32_u24 v2, 3456, v2")
    p("v_bfe_u32 v3, v1, 4, 1")
    p("v_lshlrev_b32 v3, 2, v3")
    p("v_and_b32 v4, 7, v1")
    p("v_xor_b32 v3, v3, v4")
    p("v_lshl_add_u32 v2, v3, 4, v2")
    p(f"s_mul_i32 {s(S_T0)}, {s(S_WAVE)}, {20*8*3456}")
    p(f"s_lshl_b32 {s(S_T1)}, {s(S_CG)}, 7")
    p(f"s_add_u32 {s(S_T0)}, {s(S_T0)}, {s(S_T1)}")
    p(f"s_mul_i32 {s(S_T1)}, {s(S_WAVE)}, {20*1024}")
    p(f"s_add_u32 {s(S_T1)}, {s(S_T1)}, {WT_BASE}")
    for i in range(20):
        p(f"s_add_u32 m0, {s(S_T1)}, {1024*i}")
        p(f"buffer_load_dwordx4 v2, {sr(SRD_A,4)}, {s(S_T0)} offen lds")
        if i < 19: p(f"s_add_u32 {s(S_T0)}, {s(S_T0)}, {8*3456}")

def wprep(p):
    p.c("---- W' prep ----")
    TC, TS, RED = 0, 2560, 5120
    A0, A1 = 10, 16
    p("v_lshlrev_b32 v5, 2, v0")
    for k in range(3):
        for kh in range(2):
            p(f"s_mov_b32 {s(S_T0)}, {WS_MODP + kh*15360 + 3*2560 + 1024*k}")
            p(f"buffer_load_dword {v(A0+2*k+kh)}, v5, {sr(SRD_WS,4)}, {s(S_T0)} offen{SC}")
            p(f"buffer_load_dword {v(A1+2*k+kh)}, v5, {sr(SRD_WS,4)}, {s(S_T0)} offen offset:2560{SC}")
    p("s_waitcnt vmcnt(0)")
    for k in range(3):
        p(f"v_add_f32 {v(A0+2*k)}, {v(A0+2*k)}, {v(A0+2*k+1)}"); rbf(p, A0+2*k)
        p(f"v_add_f32 {v(A1+2*k)}, {v(A1+2*k)}, {v(A1+2*k+1)}"); rbf(p, A1+2*k)
        p(f"v_add_f32 {v(A1+2*k)}, 1.0, {v(A1+2*k)}"); rbf(p, A1+2*k)
    for k in range(3):
        if k == 2:
            p("s_mov_b64 s[36:37], exec")
            p("v_cmp_gt_u32 vcc, 128, v0")
            p("s_and_b64 exec, exec, vcc")
            lab = p.newlabel('L_wp_skip')
            p(f"s_cbranch_execz {lab}")
        p(f"ds_write_b32 v5, {v(A0+2*k)} offset:{TS+1024*k}")
        p(f"ds_write_b32 v5, {v(A1+2*k)} offset:{TC+1024*k}")
        if k == 2:
            p.label(lab)
            p("s_mov_b64 exec, s[36:37]")
    p("v_bfe_u32 v2, v1, 2, 2")
    p("v_lshrrev_b32 v3, 4, v1")
    p("v_and_b32 v4, 3, v1")
    p("v_lshlrev_b32 v6, 5, v3")
    p("v_lshl_add_u32 v6, v4, 3, v6")
    p("v_lshrrev_b32 v7, 1, v2")
    p("v_lshlrev_b32 v7, 6, v7")
    p("v_xor_b32 v6, v6, v7")
    p("v_lshl_add_u32 v6, v2, 7, v6")
    p(f"s_lshl_b32 {s(S_T0)}, {s(S_WAVE)}, 10")
    p(f"s_add_u32 {s(S_T0)}, {s(S_T0)}, {WT_BASE}")
    p(f"v_add_u32 v6, {s(S_T0)}, v6")
    p(f"s_lshl_b32 {s(S_T0)}, {s(S_WAVE)}, 5")
    p(f"v_mov_b32 v7, {s(S_T0)}")
    p("v_mul_u32_u24 v8, 40960, v3")
    p("v_and_b32 v9, 15, v1")
    p("v_lshl_add_u32 v8, v9, 4, v8")
    SST = 50
    p(f"s_mul_i32 {s(SST)}, {s(S_CG)}, {4*40960}")
    p(f"s_lshl_b32 {s(S_T0)}, {s(S_M)}, 8")
    p(f"s_add_u32 {s(SST)}, {s(SST)}, {s(S_T0)}")
    p(f"s_lshl_b32 {s(S_T0)}, {s(S_WAVE)}, 9")
    p(f"s_add_u32 {s(SST)}, {s(SST)}, {s(S_T0)}")
    p(f"s_add_u32 {s(SST)}, {s(SST)}, {WS_WPF}")
    CW, SW = 30, 32
    for r in (CW, CW+1, SW, SW+1): p(f"v_mov_b32 {v(r)}, 0")
    p("s_waitcnt lgkmcnt(0)")
    p("s_barrier")
    W = 36; Cc = 40; Sb = 48; F = 56; P = 64; O = 72
    SCNT = 51
    p(f"s_mov_b32 {s(SCNT)}, 0")
    lab = p.newlabel('L_wp')
    p.loop_begin(lab)
    p(f"ds_read_b64_tr_b16 {vr(W,2)}, v6")
    p(f"ds_read_b64_tr_b16 {vr(W+2,2)}, v6 offset:512")
    p(f"ds_read_b128 {vr(Cc,4)}, v7 offset:{TC}")
    p(f"ds_read_b128 {vr(Cc+4,4)}, v7 offset:{TC+16}")
    p(f"ds_read_b128 {vr(Sb,4)}, v7 offset:{TS}")
    p(f"ds_read_b128 {vr(Sb+4,4)}, v7 offset:{TS+16}")
    p("v_add_u32 v6, 4096, v6")
    p("v_add_u32 v7, 128, v7")
    p("s_waitcnt lgkmcnt(4)")
    for k in range(4): unpack(p, F+2*k, F+2*k+1, W+k)
    p("s_waitcnt lgkmcnt(0)")
    for k in range(4):
        p(f"v_pk_mul_f32 {vr(P+2*k,2)}, {vr(F+2*k,2)}, {vr(Cc+2*k,2)}")
        p(f"v_pk_fma_f32 {vr(SW,2)}, {vr(F+2*k,2)}, {vr(Sb+2*k,2)}, {vr(SW,2)}")
    for k in range(4):
        p(f"v_cvt_pk_bf16_f32 {v(O+k)}, {v(P+2*k)}, {v(P+2*k+1)}")
        p(f"v_pk_add_f32 {vr(CW,2)}, {vr(CW,2)}, {vr(P+2*k,2)}")
    p(f"buffer_store_dwordx4 {vr(O,4)}, v8, {sr(SRD_WS,4)}, {s(SST)} offen{SC}")
    p(f"s_add_u32 {s(SST)}, {s(SST)}, 2048")
    p(f"s_add_u32 {s(SCNT)}, {s(SCNT)}, 1")
    p(f"s_cmp_lt_u32 {s(SCNT)}, 20")
    p(f"s_cbranch_scc1 {lab}")
    p.loop_end()
    p(f"v_add_f32 {v(CW)}, {v(CW)}, {v(CW+1)}")
    p(f"v_add_f32 {v(SW)}, {v(SW)}, {v(SW+1)}")
    p("v_lshlrev_b32 v5, 2, v0")
    p(f"ds_write_b32 v5, {v(CW)} offset:{RED}")
    p(f"ds_write_b32 v5, {v(SW)} offset:{RED+1024}")
    p("s_waitcnt lgkmcnt(0)")
    p("s_barrier")
    lab = p.newlabel('L_wp_end')
    p(f"s_cmp_ge_u32 {s(S_WAVE)}, 2")
    p(f"s_cbranch_scc1 {lab}")
    p("v_lshlrev_b32 v5, 2, v1")
    p(f"s_lshl_b32 {s(S_T0)}, {s(S_WAVE)}, 10")
    p(f"v_add_u32 v5, {s(S_T0)}, v5")
    for w in range(4): p(f"ds_read_b32 {v(F+w)}, v5 offset:{RED+256*w}")
    p("v_lshrrev_b32 v3, 4, v1")
    p("v_and_b32 v9, 15, v1")
    p("v_lshlrev_b32 v3, 8, v3")
    p("v_lshl_add_u32 v3, v9, 2, v3")
    p(f"s_lshl_b32 {s(S_T0)}, {s(S_CG)}, 10")
    p(f"s_lshl_b32 {s(S_T1)}, {s(S_M)}, 7")
    p(f"s_add_u32 {s(S_T0)}, {s(S_T0)}, {s(S_T1)}")
    p(f"s_lshl_b32 {s(S_T1)}, {s(S_WAVE)}, 6")
    p(f"s_add_u32 {s(S_T0)}, {s(S_T0)}, {s(S_T1)}")
    p(f"s_add_u32 {s(S_T0)}, {s(S_T0)}, {WS_CWS}")
    p("s_waitcnt lgkmcnt(0)")
    p(f"v_add_f32 {v(F)}, {v(F)}, {v(F+1)}")
    p(f"v_add_f32 {v(F+2)}, {v(F+2)}, {v(F+3)}")
    p(f"v_add_f32 {v(F)}, {v(F)}, {v(F+2)}")
    p(f"buffer_store_dword {v(F)}, v3, {sr(SRD_WS,4)}, {s(S_T0)} offen{SC}")
    p.label(lab)

def wdprep(p):
    p.c("---- W_down prep ----")
    srds(p, [(SRD_A, 'Wd')])
    S_KS = 46
    p(f"s_sub_u32 {s(S_CG)}, s2, 214")
    p(f"s_and_b32 {s(S_M)}, {s(S_CG)}, 3")
    p(f"s_lshr_b32 {s(S_CG)}, {s(S_CG)}, 2")
    p(f"s_mul_i32 {s(S_KS)}, {s(S_M)}, 14")
    p(f"s_cmp_eq_u32 {s(S_M)}, 3")
    p(f"s_cselect_b32 {s(S_T0)}, 1, 0")
    p(f"s_sub_u32 {s(S_KS)}, {s(S_KS)}, {s(S_T0)}")
    p("v_lshrrev_b32 v2, 3, v1")
    p("v_mul_u32_u24 v2, 1280, v2")
    p("v_bfe_u32 v3, v1, 1, 2")
    p("v_bfe_u32 v4, v1, 4, 2")
    p("v_xor_b32 v3, v3, v4")
    p("v_and_b32 v4, 1, v1")
    p("v_lshl_add_u32 v3, v3, 1, v4")
    p("v_lshl_add_u32 v2, v3, 4, v2")
    p(f"s_mul_i32 {s(S_T0)}, {s(S_KS)}, {32*1280}")
    p(f"s_mul_i32 {s(S_T1)}, {s(S_WAVE)}, {14*8*1280}")
    p(f"s_add_u32 {s(S_T0)}, {s(S_T0)}, {s(S_T1)}")
    p(f"s_lshl_b32 {s(S_T1)}, {s(S_CG)}, 7")
    p(f"s_add_u32 {s(S_T0)}, {s(S_T0)}, {s(S_T1)}")
    p(f"s_mul_i32 {s(S_T1)}, {s(S_WAVE)}, {14*1024}")
    for i in range(14):
        p(f"s_add_u32 m0, {s(S_T1)}, {1024*i}")
        p(f"buffer_load_dwordx4 v2, {sr(SRD_A,4)}, {s(S_T0)} offen lds")
        if i < 13: p(f"s_add_u32 {s(S_T0)}, {s(S_T0)}, {8*1280}")
    p("v_lshrrev_b32 v3, 4, v1")
    p("v_bfe_u32 v4, v1, 2, 2")
    p("v_lshrrev_b32 v5, 1, v3")
    p("v_lshlrev_b32 v5, 4, v5")
    p("v_and_b32 v6, 1, v3")
    p("v_lshl_add_u32 v5, v6, 2, v5")
    p("v_add_u32 v5, v5, v4")
    p("v_lshrrev_b32 v7, 1, v4")
    p("v_lshl_add_u32 v7, v6, 1, v7")
    p(f"v_xor_b32 v7, {s(S_WAVE)}, v7")
    p("v_lshlrev_b32 v7, 5, v7")
    p("v_lshl_add_u32 v7, v5, 7, v7")
    p("v_and_b32 v6, 3, v1")
    p("v_lshl_add_u32 v7, v6, 3, v7")
    p("v_lshlrev_b32 v8, 4, v1")
    p(f"s_lshl_b32 {s(S_T0)}, {s(S_CG)}, 2")
    p(f"s_add_u32 {s(S_T0)}, {s(S_T0)}, {s(S_WAVE)}")
    p(f"s_mul_i32 {s(S_T0)}, {s(S_T0)}, 54")
    p(f"s_add_u32 {s(S_T0)}, {s(S_T0)}, {s(S_KS)}")
    p(f"s_lshl_b32 {s(S_T0)}, {s(S_T0)}, 10")
    p(f"s_add_u32 {s(S_T0)}, {s(S_T0)}, {WS_WDF}")
    p("s_waitcnt vmcnt(0)")
    p("s_barrier")
    R = 10
    for k in range(14):
        p(f"ds_read_b64_tr_b16 {vr(R+4*k,2)}, v7 offset:{4096*k}")
        p(f"ds_read_b64_tr_b16 {vr(R+4*k+2,2)}, v7 offset:{4096*k+1024}")
        if k >= 3:
            kk = k - 3
            p("s_waitcnt lgkmcnt(6)")
            p(f"buffer_store_dwordx4 {vr(R+4*kk,4)}, v8, {sr(SRD_WS,4)}, {s(S_T0)} offen{SC}")
            p(f"s_add_u32 {s(S_T0)}, {s(S_T0)}, 1024")
    for kk in range(11, 14):
        if kk == 13:
            lab = p.newlabel('L_wd_skip')
            p(f"s_cmp_ge_u32 {s(S_M)}, 2")
            p(f"s_cbranch_scc1 {lab}")
        p(f"s_waitcnt lgkmcnt({2*(13-kk)})")
        p(f"buffer_store_dwordx4 {vr(R+4*kk,4)}, v8, {sr(SRD_WS,4)}, {s(S_T0)} offen{SC}")
        p(f"s_add_u32 {s(S_T0)}, {s(S_T0)}, 1024")
    p.label(lab)

def prep(p):
    l_wd = p.newlabel('L_wd'); l_done = p.newlabel('L_prepdone')
    p("s_cmp_ge_u32 s2, 214")
    p(f"s_cbranch_scc1 {l_wd}")
    wprep_dma(p)
    wprep(p)
    p(f"s_branch {l_done}")
    p.label(l_wd)
    p("s_cmp_ge_u32 s2, 254")
    p(f"s_cbranch_scc1 {l_done}")
    wdprep(p)
    p.label(l_done)
```

```python
import sys, re
from common import *
import phA, phK, phB, phP, phC, phD
from mk import make
NAME = 'adaLN_cond__ssm_conv_s4d__glu_gated_geglu__prompt'
HDR = open(f'cdna_kernels/{NAME}.s.ref').read().split('; Override launch')[0]
def kA(p): phA.phaseA1(p)
def kB(p):
    l = p.newlabel('L_prep'); e = p.newlabel('L_Bend')
    p("s_cmp_ge_u32 s2, 160")
    p(f"s_cbranch_scc1 {l}")
    phK.kgen(p); phB.conv_xloads(p); phB.conv(p)
    p(f"s_branch {e}")
    p.label(l)
    phP.prep(p)
    p.label(e)
def kC(p): phC.prefetch(p); phC.main(p)
def kD(p): phD.prefetch(p); phD.main(p)
def kE(p): pass
def multi(path, extra_empty=0):
    ks = [(NAME + '_kernel', kA), ('phB_kernel', kB), ('phC_kernel', kC), ('phD_kernel', kD)]
    lines = [f"; @launch kernel={n} grid=(256,1,1) block=(256,1,1) lds=163840" for n, _ in ks]
    for i in range(extra_empty): lines.append("; @launch kernel=phE_kernel grid=(256,1,1) block=(256,1,1) lds=163840")
    if extra_empty: ks.append(('phE_kernel', kE))
    out = HDR + '\n'.join(lines) + '\n.amdgcn_target "amdgcn-amd-amdhsa--gfx950"\n'
    for n, fn in ks:
        t, errs = make(n, fn)
        for e in errs[:20]: print(n, e)
        out += t
    open(path, 'w').write(out)
    print(path, len(out))
if __name__ == '__main__':
    multi(f'cdna_kernels/{NAME}.s')
    multi('multi4.s')
    multi('multi4e2.s', 2)
    multi('multi4e6.s', 6)
```

```python
import sys
sys.path.insert(0, 'work')
from dsl import *

L, D, NMODE, DF = 2048, 640, 128, 1728
KA = dict(x=0, logA=8, Aim=16, Cre=24, Cim=32, logdt=40, dskip=48, Bx=56, Wg=64, Wu=72, Wd=80, c=88, wmod=96, out=104, dbg=112, ws=120)
NB = dict(x=L*D*2, logA=D*NMODE*2, Aim=D*NMODE*2, Cre=D*NMODE*2, Cim=D*NMODE*2, logdt=D*2, dskip=D*2,
          Wg=D*DF*2, Wu=D*DF*2, Wd=DF*D*2, c=D*2, wmod=D*6*D*2, out=L*D*2, dbg=256, ws=0x2000000)
WS_NF   = 0x0000000
WS_X1F  = 0x0280000
WS_MODP = 0x0500000
WS_CWS  = 0x0510000
WS_SYNC = 0x0520000
WS_WPF  = 0x0600000
WS_WDF  = 0x0A40000
WS_H2F  = 0x0C60000
SC = ' sc1'

S_WG = 2
S_WAVE = 4
S_T0 = 5; S_T1 = 6; S_T2 = 7
SRD_WS = 8
SRD_A = 12; SRD_B = 16; SRD_C = 20; SRD_D = 24; SRD_E = 28
LOG2E = 1.4426950408889634

def f2u(x):
    import struct
    return struct.unpack('<I', struct.pack('<f', x))[0]
def fl(x): return hex(f2u(x))

def load_srd(p, srd, name, tmp=None):
    p(f"s_load_dwordx2 {sr(srd,2)}, s[0:1], {KA[name]}")
def finish_srd(p, srd, name):
    p(f"s_mov_b32 {s(srd+2)}, {hex(NB[name])}")
    p(f"s_mov_b32 {s(srd+3)}, 0x00020000")

def srds(p, pairs):
    for srd, name in pairs: load_srd(p, srd, name)
    p("s_waitcnt lgkmcnt(0)")
    for srd, name in pairs: finish_srd(p, srd, name)

def prologue(p, nwg=256):
    p(f"s_cmp_ge_u32 s2, {nwg}")
    p("s_cbranch_scc1 L_exit")
    p(f"s_load_dwordx2 {sr(SRD_WS,2)}, s[0:1], {KA['ws']}")
    p("v_lshrrev_b32 v1, 6, v0")
    p("s_nop 0")
    p(f"v_readfirstlane_b32 {s(S_WAVE)}, v1")
    p("v_and_b32 v1, 63, v0")
    p("s_waitcnt lgkmcnt(0)")
    finish_srd(p, SRD_WS, 'ws')

def row16_sum(p, r, t):
    for k in (8, 4, 2, 1):
        p(f"v_add_f32_dpp {v(r)}, {v(r)}, {v(r)} row_ror:{k} row_mask:0xf bank_mask:0xf")

def cross_row_sum(p, r, t):
    p(f"v_mov_b32 {v(t)}, {v(r)}")
    p(f"v_permlane16_swap_b32 {v(t)}, {v(r)}")
    p(f"v_add_f32 {v(r)}, {v(r)}, {v(t)}")
    p(f"v_mov_b32 {v(t)}, {v(r)}")
    p(f"v_permlane32_swap_b32 {v(t)}, {v(r)}")
    p(f"v_add_f32 {v(r)}, {v(r)}, {v(t)}")

def unpack(p, lo, hi, src):
    p(f"v_lshlrev_b32 {v(lo)}, 16, {v(src)}")
    p(f"v_and_b32 {v(hi)}, 0xffff0000, {v(src)}")

def kernel_text(name, body, vgpr=256, agpr=256, sgpr=102):
    acc = (vgpr + 3)//4*4
    return f""".text
.globl {name}
.p2align 8
.type {name},@function
{name}:
{body}
.section .rodata,"a"
.p2align 6
.amdhsa_kernel {name}
  .amdhsa_next_free_vgpr {acc + agpr if agpr else vgpr}
  .amdhsa_next_free_sgpr {sgpr}
  .amdhsa_accum_offset {acc}
  .amdhsa_group_segment_fixed_size 0
  .amdhsa_kernarg_size 128
  .amdhsa_user_sgpr_count 2
  .amdhsa_user_sgpr_kernarg_segment_ptr 1
  .amdhsa_system_sgpr_workgroup_id_x 1
.end_amdhsa_kernel
"""

WS_STAMP = 0x1F00000
STAMPS = False
def stamp(p, slot, r0=253):
    if not STAMPS: return
    lab = p.newlabel('L_stamp')
    p(f"s_cmp_eq_u32 {s(S_WAVE)}, 0")
    p(f"s_cbranch_scc0 {lab}")
    p("s_memrealtime s[98:99]")
    p("s_memtime s[92:93]")
    p("s_lshl_b32 s97, s2, 2")
    p(f"s_add_u32 s97, s97, {WS_STAMP + slot*1024}")
    p("s_waitcnt lgkmcnt(0)")
    p(f"v_mov_b32 v{r0+1}, s98")
    p(f"v_mov_b32 v{r0+2}, s97")
    p("s_mov_b64 s[94:95], exec")
    p("s_mov_b64 exec, 1")
    p(f"buffer_store_dword v{r0+1}, v{r0+2}, {sr(SRD_WS,4)}, 0 offen")
    p(f"v_mov_b32 v{r0}, s92")
    p(f"v_add_u32 v{r0+2}, 0x10000, v{r0+2}")
    p(f"buffer_store_dword v{r0}, v{r0+2}, {sr(SRD_WS,4)}, 0 offen")
    p("s_mov_b64 exec, s[94:95]")
    p.label(lab)

TICK0 = 62
def tick(p, idx):
    if not STAMPS: return
    p("s_memtime s[92:93]")
    p("s_waitcnt lgkmcnt(0)")
    p(f"s_mov_b32 s{TICK0+idx}, s92")
def dump_ticks(p, n, slotbase, r0=253):
    if not STAMPS: return
    p("s_lshl_b32 s97, s2, 2")
    p(f"s_add_u32 s97, s97, {s(S_WAVE)}")
    p("s_lshl_b32 s97, s97, 2")
    p(f"s_add_u32 s97, s97, {WS_STAMP + 0x20000 + slotbase*4096}")
    p("s_mov_b64 s[94:95], exec")
    p("s_mov_b64 exec, 1")
    p(f"v_mov_b32 v{r0+1}, s97")
    for i in range(n):
        p(f"v_mov_b32 v{r0}, s{TICK0+i}")
        p(f"buffer_store_dword v{r0}, v{r0+1}, {sr(SRD_WS,4)}, 0 offen")
        p(f"v_add_u32 v{r0+1}, 4096, v{r0+1}")
    p("s_mov_b64 exec, s[94:95]")
```

```python
from common import *
import common
import math
S_MT, S_NT, S_PB0, S_CNT, S_T = 44, 45, 46, 47, 48
S_Q = 49
S_SLOT = 50
S_WSRC = 51
S_H2 = 52
S_M0B = 53
S_RSLOT = 54
SLAB = 40960
CWL = 3*SLAB
XF = 10; ACC = [170, 186]; CV = 202; G_ = 218; U_ = 222; A_ = 226
VA, VN, VCV, VH2 = 2, 3, 4, 5
R_, RM_, VC2 = 250, 251, 249
OUT = 252
WR = 0
ST1, ST2 = 16, 20
SRD_W = SRD_A
C1 = -2.0*LOG2E*math.sqrt(2.0/math.pi)
C2 = C1*0.044715

def ids(p):
    p(f"s_and_b32 {s(S_T0)}, s2, 7")
    p(f"s_lshr_b32 {s(S_T1)}, s2, 3")
    p(f"s_and_b32 {s(S_MT)}, {s(S_T0)}, 1")
    p(f"s_lshl_b32 {s(S_MT)}, {s(S_MT)}, 3")
    p(f"s_and_b32 {s(S_T2)}, {s(S_T1)}, 7")
    p(f"s_add_u32 {s(S_MT)}, {s(S_MT)}, {s(S_T2)}")
    p(f"s_lshr_b32 {s(S_T0)}, {s(S_T0)}, 1")
    p(f"s_lshr_b32 {s(S_T1)}, {s(S_T1)}, 3")
    p(f"s_mul_i32 {s(S_PB0)}, {s(S_T0)}, 27")
    p(f"s_mul_i32 {s(S_T2)}, {s(S_T1)}, 7")
    p(f"s_add_u32 {s(S_PB0)}, {s(S_PB0)}, {s(S_T2)}")
    p(f"s_cmp_eq_u32 {s(S_T1)}, 3")
    p(f"s_cselect_b32 {s(S_CNT)}, 6, 7")
    p(f"s_lshl_b32 {s(S_T)}, {s(S_MT)}, 2")
    p(f"s_add_u32 {s(S_T)}, {s(S_T)}, {s(S_WAVE)}")

def dma_slab(group_only=False):
    out = []
    for k in range(10):
        pre = []
        if k == 0:
            pre.append(f"s_add_u32 m0, {s(S_SLOT)}, {s(S_M0B)}")
            pre.append(f"s_mov_b32 {s(S_T0)}, {s(S_WSRC)}")
        elif k % 4 == 0:
            pre.append("s_add_u32 m0, m0, 4096")
            pre.append(f"s_add_u32 {s(S_T0)}, {s(S_T0)}, 4096")
        pre.append(f"buffer_load_dwordx4 v1x16, {sr(SRD_W,4)}, {s(S_T0)} offen offset:{1024*(k%4)}{SC} lds".replace('v1x16', v(6)))
        out.append(pre)
    return out

def advance_slab(p):
    p(f"s_add_u32 {s(S_WSRC)}, {s(S_WSRC)}, {SLAB}")
    p(f"s_add_u32 {s(S_SLOT)}, {s(S_SLOT)}, {SLAB}")
    p(f"s_cmp_eq_u32 {s(S_SLOT)}, {3*SLAB}")
    p(f"s_cselect_b32 {s(S_SLOT)}, 0, {s(S_SLOT)}")

def prefetch(p):
    p.c("---- GEMM1 prefetch ----")
    tick(p, 0)
    ids(p)
    p(f"s_mov_b32 {s(SRD_W)}, {s(SRD_WS)}")
    p(f"s_mov_b32 {s(SRD_W+1)}, {s(SRD_WS+1)}")
    p(f"s_mov_b32 {s(SRD_W+2)}, {hex(NB['ws'])}")
    p(f"s_mov_b32 {s(SRD_W+3)}, 0x00020000")
    p("v_lshlrev_b32 v6, 4, v1")
    p(f"s_mul_i32 {s(S_M0B)}, {s(S_WAVE)}, 10240")
    p(f"s_mul_i32 {s(S_WSRC)}, {s(S_PB0)}, {SLAB}")
    p(f"s_add_u32 {s(S_WSRC)}, {s(S_WSRC)}, {s(S_M0B)}")
    p(f"s_add_u32 {s(S_WSRC)}, {s(S_WSRC)}, {WS_WPF}")
    p(f"s_mov_b32 {s(S_SLOT)}, 0")
    for sl in range(3):
        for grp in dma_slab():
            for x in grp: p(x)
        advance_slab(p)
    lab = p.newlabel('L_cw')
    p(f"s_cmp_ge_u32 {s(S_WAVE)}, 2")
    p(f"s_cbranch_scc1 {lab}")
    p(f"s_lshl_b32 {s(S_T0)}, {s(S_PB0)}, 8")
    p(f"s_lshl_b32 {s(S_T1)}, {s(S_WAVE)}, 10")
    p(f"s_add_u32 {s(S_T0)}, {s(S_T0)}, {s(S_T1)}")
    p(f"s_add_u32 {s(S_T0)}, {s(S_T0)}, {WS_CWS}")
    p(f"s_add_u32 m0, {s(S_T1)}, {CWL}")
    p(f"buffer_load_dwordx4 v6, {sr(SRD_WS,4)}, {s(S_T0)} offen{SC} lds")
    p.label(lab)

def epilogue_ops(acc):
    L = []
    for jh in range(2):
        for vec in range(4):
            L.append(('rd', f"ds_read_b128 {vr(CV+4*vec,4)}, {v(VCV)} offset:{64*vec + 32*jh}", f"cv{jh}"))
        L.append(('need', f"cv{jh}"))
        g = lambda i: acc + 4*jh + i
        u = lambda i: acc + 8 + 4*jh + i
        for i in range(4): L.append(f"v_fma_f32 {v(G_+i)}, {v(RM_)}, {v(CV+i)}, {v(CV+4+i)}")
        for i in range(4): L.append(f"v_fma_f32 {v(U_+i)}, {v(RM_)}, {v(CV+8+i)}, {v(CV+12+i)}")
        for i in range(4): L.append(f"v_fma_f32 {v(G_+i)}, {v(R_)}, {v(g(i))}, {v(G_+i)}")
        for i in range(4): L.append(f"v_fma_f32 {v(U_+i)}, {v(R_)}, {v(u(i))}, {v(U_+i)}")
        for i in range(4): L.append(f"v_mul_f32 {v(A_+i)}, {v(G_+i)}, {v(G_+i)}")
        for i in range(4): L.append(f"v_fmaak_f32 {v(A_+i)}, {v(A_+i)}, {v(VC2)}, {fl(C1)}")
        for i in range(4): L.append(f"v_mul_f32 {v(A_+i)}, {v(G_+i)}, {v(A_+i)}")
        for i in range(4): L.append(f"v_exp_f32 {v(A_+i)}, {v(A_+i)}")
        for i in range(4): L.append(f"v_mul_f32 {v(G_+i)}, {v(G_+i)}, {v(U_+i)}")
        for i in range(4): L.append(f"v_add_f32 {v(A_+i)}, 1.0, {v(A_+i)}")
        for i in range(4): L.append(f"v_rcp_f32 {v(A_+i)}, {v(A_+i)}")
        for i in range(4): L.append(f"v_mul_f32 {v(G_+i)}, {v(G_+i)}, {v(A_+i)}")
        L.append(f"v_cvt_pk_bf16_f32 {v(OUT+2*jh)}, {v(G_)}, {v(G_+1)}")
        L.append(f"v_cvt_pk_bf16_f32 {v(OUT+2*jh+1)}, {v(G_+2)}, {v(G_+3)}")
    L.append(f"buffer_store_dwordx4 {vr(OUT,4)}, {v(VH2)}, {sr(SRD_WS,4)}, {s(S_H2)} offen{SC}")
    return L

class LQ:
    def __init__(self, p, init): self.p = p; self.q = list(init)
    def rd(self, text, tag): self.p(text); self.q.append(tag)
    def need(self, tag):
        if tag in self.q:
            last = max(i for i, t in enumerate(self.q) if t == tag)
            n = len(self.q) - 1 - last
            self.p(f"s_waitcnt lgkmcnt({min(n,15)})")
            self.q = self.q[last+1:]

def emit_item(lq, it):
    if isinstance(it, str): lq.p(it)
    elif it[0] == 'rd': lq.rd(it[1], it[2])
    elif it[0] == 'need': lq.need(it[1])

def wread(k, addr):
    return f"ds_read_b128 {ar(WR+4*(k%4),4)}, {v(addr)} offset:{1024*(k%40)}"

def tail_sync(p, lq, vmn):
    p(f"s_waitcnt vmcnt({vmn}) lgkmcnt(0)"); lq.q = []
    p("s_barrier")

def mfma(acc, k, first):
    c = '0' if first else vr(acc,16)
    return f"v_mfma_f32_32x32x16_bf16 {vr(acc,16)}, {ar(WR+4*(k%4),4)}, {vr(XF+4*k,4)}, {c}"

def gemm_pass(p, accn, acco):
    lq = LQ(p, ['w0', 'w1', 'w2'])
    p(f"s_add_u32 {s(S_T1)}, {s(S_Q)}, 2")
    p(f"s_cmp_lt_u32 {s(S_T1)}, {s(S_CNT)}")
    p(f"s_cselect_b32 {s(SRD_W+2)}, {hex(NB['ws'])}, 0")
    ep = epilogue_ops(acco)
    dm = dma_slab()
    nep = len(ep); ei = 0
    for k in range(40):
        lq.need(f"w{k}")
        p(mfma(accn, k, k == 0))
        if k + 3 < 40: lq.rd(wread(k+3, VA), f"w{k+3}")
        if k % 2 == 0 and k < 20:
            for x in dm[k//2]: p(x)
        if k == 20: advance_slab(p)
        if 1 <= k <= 35:
            tgt = int(round(nep * k / 35.0))
            while ei < tgt:
                emit_item(lq, ep[ei]); ei += 1
        if k == 37:
            tail_sync(p, lq, 12)
            lq.rd(wread(0, VN), 'w0')
        if k == 38: lq.rd(wread(1, VN), 'w1')
        if k == 39: lq.rd(wread(2, VN), 'w2')
    assert ei == nep
    pass_end(p)

def pass_end(p):
    p(f"v_mov_b32 {v(VA)}, {v(VN)}")
    p(f"s_add_u32 {s(S_RSLOT)}, {s(S_RSLOT)}, {SLAB}")
    p(f"s_cmp_eq_u32 {s(S_RSLOT)}, {3*SLAB}")
    p(f"s_cselect_b32 {s(S_RSLOT)}, 0, {s(S_RSLOT)}")
    p(f"v_add_u32 {v(VN)}, {s(S_RSLOT)}, v6")
    p(f"s_add_u32 {s(S_Q)}, {s(S_Q)}, 1")

def main(p):
    p.c("---- GEMM1 main ----")
    tick(p, 1)
    p(f"s_mul_i32 {s(S_T0)}, {s(S_T)}, 40960")
    p(f"s_add_u32 {s(S_T0)}, {s(S_T0)}, {WS_X1F}")
    for ks in range(40):
        p(f"buffer_load_dwordx4 {vr(XF+4*ks,4)}, v6, {sr(SRD_WS,4)}, {s(S_T0)} offen offset:{1024*(ks%4)}{SC}")
        if ks % 4 == 3 and ks < 39: p(f"s_add_u32 {s(S_T0)}, {s(S_T0)}, 4096")
    p(f"v_mov_b32 {v(VA)}, v6")
    p(f"v_add_u32 {v(VN)}, {SLAB}, v6")
    p(f"s_mov_b32 {s(S_RSLOT)}, {SLAB}")
    p("v_lshrrev_b32 v7, 5, v1")
    p(f"v_lshlrev_b32 {v(VCV)}, 4, v7")
    p(f"v_add_u32 {v(VCV)}, {CWL}, {v(VCV)}")
    p("v_bfe_u32 v8, v1, 4, 1")
    p(f"v_mul_u32_u24 {v(VH2)}, {54*1024}, v8")
    p(f"v_lshl_add_u32 {v(VH2)}, v7, 8, {v(VH2)}")
    p("v_and_b32 v8, 15, v1")
    p(f"v_lshl_add_u32 {v(VH2)}, v8, 4, {v(VH2)}")
    p(f"s_mul_i32 {s(S_H2)}, {s(S_T)}, {2*54*1024}")
    p(f"s_lshl_b32 {s(S_T0)}, {s(S_PB0)}, 9")
    p(f"s_add_u32 {s(S_H2)}, {s(S_H2)}, {s(S_T0)}")
    p(f"s_add_u32 {s(S_H2)}, {s(S_H2)}, {WS_H2F}")
    p(f"v_mov_b32 {v(VC2)}, {fl(C2)}")
    ONE = 8
    p(f"v_mov_b32 v{ONE}, 0x3f803f80")
    p(f"v_mov_b32 v{ONE+1}, 0x3f803f80")
    for k in range(4):
        p(f"v_accvgpr_write_b32 {a(ST1+k)}, 0")
        p(f"v_accvgpr_write_b32 {a(ST2+k)}, 0")
    tick(p, 2)
    p("s_waitcnt vmcnt(40)")
    p("s_barrier")
    tick(p, 3)
    lq = LQ(p, [])
    for k in range(3): lq.rd(wread(k, VA), f"w{k}")
    for k in range(40):
        x = XF + 4*k
        p(f"s_waitcnt vmcnt({39-k})")
        p(f"v_permlane16_swap_b32 {v(x)}, {v(x+2)}")
        p(f"v_permlane16_swap_b32 {v(x+1)}, {v(x+3)}")
        lq.need(f"w{k}")
        p(f"v_mfma_f32_4x4x4_16b_bf16 {ar(ST1,4)}, {vr(ONE,2)}, {vr(x,2)}, {ar(ST1,4)}")
        p(f"v_mfma_f32_4x4x4_16b_bf16 {ar(ST2,4)}, {vr(x,2)}, {vr(x,2)}, {ar(ST2,4)}")
        p(mfma(ACC[0], k, k == 0))
        p(f"v_mfma_f32_4x4x4_16b_bf16 {ar(ST1,4)}, {vr(ONE,2)}, {vr(x+2,2)}, {ar(ST1,4)}")
        p(f"v_mfma_f32_4x4x4_16b_bf16 {ar(ST2,4)}, {vr(x+2,2)}, {vr(x+2,2)}, {ar(ST2,4)}")
        if k + 3 < 40: lq.rd(wread(k+3, VA), f"w{k+3}")
        if k == 37:
            tail_sync(p, lq, 2)
            lq.rd(wread(0, VN), 'w0')
        if k == 38: lq.rd(wread(1, VN), 'w1')
        if k == 39: lq.rd(wread(2, VN), 'w2')
    tick(p, 4)
    T = G_
    p(f"v_accvgpr_read_b32 {v(T)}, {a(ST1)}")
    for k in range(4): p(f"v_accvgpr_read_b32 {v(T+2+k)}, {a(ST2+k)}")
    p("v_and_b32 v7, 3, v1")
    p("v_cmp_eq_u32 vcc, 1, v7")
    p(f"v_cndmask_b32 {v(T+2)}, {v(T+2)}, {v(T+3)}, vcc")
    p("v_cmp_eq_u32 vcc, 2, v7")
    p(f"v_cndmask_b32 {v(T+2)}, {v(T+2)}, {v(T+4)}, vcc")
    p("v_cmp_eq_u32 vcc, 3, v7")
    p(f"v_cndmask_b32 {v(T+2)}, {v(T+2)}, {v(T+5)}, vcc")
    for r in (T, T+2):
        p(f"v_mov_b32 {v(T+6)}, {v(r)}")
        p(f"v_permlane32_swap_b32 {v(T+6)}, {v(r)}")
        p(f"v_add_f32 {v(r)}, {v(r)}, {v(T+6)}")
    p(f"v_mul_f32 {v(T)}, {fl(1.0/640)}, {v(T)}")
    p(f"v_mul_f32 {v(T+2)}, {fl(1.0/640)}, {v(T+2)}")
    p(f"v_fma_f32 {v(T+2)}, -{v(T)}, {v(T)}, {v(T+2)}")
    p(f"v_max_f32 {v(T+2)}, 0, {v(T+2)}")
    p(f"v_add_f32 {v(T+2)}, {fl(1e-5)}, {v(T+2)}")
    p(f"v_rsq_f32 {v(R_)}, {v(T+2)}")
    p(f"v_mul_f32 {v(RM_)}, -{v(T)}, {v(R_)}")
    p(f"s_mov_b32 {s(S_Q)}, 0")
    pass_end(p)
    tick(p, 5)
    l_fin0 = p.newlabel('L_g1fin0'); l_fin1 = p.newlabel('L_g1fin1'); lab = p.newlabel('L_g1loop')
    p.loop_begin(lab)
    gemm_pass(p, ACC[1], ACC[0])
    p(f"v_add_u32 {v(VCV)}, 256, {v(VCV)}")
    p(f"s_add_u32 {s(S_H2)}, {s(S_H2)}, 512")
    p(f"s_cmp_ge_u32 {s(S_Q)}, {s(S_CNT)}")
    p(f"s_cbranch_scc1 {l_fin1}")
    gemm_pass(p, ACC[0], ACC[1])
    p(f"v_add_u32 {v(VCV)}, 256, {v(VCV)}")
    p(f"s_add_u32 {s(S_H2)}, {s(S_H2)}, 512")
    p(f"s_cmp_lt_u32 {s(S_Q)}, {s(S_CNT)}")
    p(f"s_cbranch_scc1 {lab}")
    p.loop_end()
    p(f"s_branch {l_fin0}")
    p.label(l_fin1)
    p("s_nop 15")
    for k in range(16): p(f"v_mov_b32 {v(ACC[0]+k)}, {v(ACC[1]+k)}")
    p.label(l_fin0)
    tick(p, 6)
    p("s_nop 15")
    lq = LQ(p, ['w0', 'w1', 'w2'])
    for it in epilogue_ops(ACC[0]): emit_item(lq, it)
    tick(p, 7)
    if common.STAMPS:
        p("s_waitcnt vmcnt(0)"); tick(p, 8); dump_ticks(p, 9, 0, 230)
```

```python
from common import *
import common
S_MT2, S_NT2, S_KS0 = 44, 45, 46
S_HB = 56
X1R = 10; GB = 20; WV = 40; BR = 144; NRING = 7
AACC = 0; WA = 80
def wreg(fi):
    return ar(WA + 4*fi, 4) if fi < 44 else vr(WV + 4*(fi-44), 4)
def rbf(p, r):
    p(f"v_cvt_pk_bf16_f32 {v(r)}, {v(r)}, {v(r)}")
    p(f"v_lshlrev_b32 {v(r)}, 16, {v(r)}")

def prefetch(p):
    p.c("---- GEMM2 prefetch ----")
    tick(p, 0)
    p(f"s_and_b32 {s(S_T0)}, s2, 7")
    p(f"s_lshr_b32 {s(S_T1)}, s2, 3")
    p(f"s_lshr_b32 {s(S_MT2)}, {s(S_T0)}, 1")
    p(f"s_lshl_b32 {s(S_MT2)}, {s(S_MT2)}, 3")
    p(f"s_and_b32 {s(S_T2)}, {s(S_T1)}, 7")
    p(f"s_add_u32 {s(S_MT2)}, {s(S_MT2)}, {s(S_T2)}")
    p(f"s_and_b32 {s(S_NT2)}, {s(S_T0)}, 1")
    p(f"s_lshl_b32 {s(S_NT2)}, {s(S_NT2)}, 2")
    p(f"s_lshr_b32 {s(S_T1)}, {s(S_T1)}, 3")
    p(f"s_add_u32 {s(S_NT2)}, {s(S_NT2)}, {s(S_T1)}")
    p(f"s_mul_i32 {s(S_KS0)}, {s(S_WAVE)}, 14")
    p(f"s_cmp_eq_u32 {s(S_WAVE)}, 3")
    p(f"s_cselect_b32 {s(S_T0)}, 1, 0")
    p(f"s_sub_u32 {s(S_KS0)}, {s(S_KS0)}, {s(S_T0)}")
    p("v_lshlrev_b32 v6, 4, v1")
    p("v_lshrrev_b32 v7, 4, v1")
    p("v_lshlrev_b32 v2, 4, v7")
    p(f"s_mul_i32 {s(S_T0)}, {s(S_NT2)}, 320")
    p(f"s_add_u32 {s(S_T0)}, {s(S_T0)}, {WS_MODP + 12800}")
    p(f"s_add_u32 {s(S_T1)}, {s(S_T0)}, 15360")
    TG = BR
    for j in range(5):
        p(f"buffer_load_dwordx4 {vr(GB+4*j,4)}, v2, {sr(SRD_WS,4)}, {s(S_T0)} offen offset:{64*j}{SC}")
        p(f"buffer_load_dwordx4 {vr(TG+4*j,4)}, v2, {sr(SRD_WS,4)}, {s(S_T1)} offen offset:{64*j}{SC}")
    tk = p.vt()
    p("v_and_b32 v8, 15, v1")
    p("v_lshlrev_b32 v3, 8, v7")
    p("v_lshl_add_u32 v3, v8, 4, v3")
    p(f"s_lshl_b32 {s(S_T0)}, {s(S_MT2)}, 1")
    p(f"s_lshr_b32 {s(S_T1)}, {s(S_WAVE)}, 1")
    p(f"s_add_u32 {s(S_T0)}, {s(S_T0)}, {s(S_T1)}")
    p(f"s_mul_i32 {s(S_T0)}, {s(S_T0)}, 40960")
    p(f"s_mul_i32 {s(S_T1)}, {s(S_NT2)}, {20*256}")
    p(f"s_add_u32 {s(S_T0)}, {s(S_T0)}, {s(S_T1)}")
    p(f"s_and_b32 {s(S_T1)}, {s(S_WAVE)}, 1")
    p(f"s_lshl_b32 {s(S_T1)}, {s(S_T1)}, 3")
    p(f"s_add_u32 {s(S_T0)}, {s(S_T0)}, {s(S_T1)}")
    p(f"s_add_u32 {s(S_T0)}, {s(S_T0)}, {WS_X1F}")
    for j in range(5):
        if j == 4: p(f"s_add_u32 {s(S_T0)}, {s(S_T0)}, 4096")
        p(f"buffer_load_dwordx2 {vr(X1R+2*j,2)}, v3, {sr(SRD_WS,4)}, {s(S_T0)} offen offset:{1024*(j%4)}{SC}")
    for j in range(5):
        p(f"s_mul_i32 {s(S_T0)}, {s(S_NT2)}, 5")
        p(f"s_add_u32 {s(S_T0)}, {s(S_T0)}, {j}")
        p(f"s_mul_i32 {s(S_T0)}, {s(S_T0)}, 54")
        p(f"s_add_u32 {s(S_T0)}, {s(S_T0)}, {s(S_KS0)}")
        p(f"s_lshl_b32 {s(S_T0)}, {s(S_T0)}, 10")
        p(f"s_add_u32 {s(S_T0)}, {s(S_T0)}, {WS_WDF}")
        for k in range(14):
            if k % 4 == 0 and k > 0: p(f"s_add_u32 {s(S_T0)}, {s(S_T0)}, 4096")
            p(f"buffer_load_dwordx4 {wreg(5*k+j)}, v6, {sr(SRD_WS,4)}, {s(S_T0)} offen offset:{1024*(k%4)}{SC}")
        if j == 0:
            p.wait_vm(tk)
            for r in range(20):
                p(f"v_add_f32 {v(GB+r)}, {v(GB+r)}, {v(TG+r)}"); rbf(p, GB+r)
    for tb in range(4):
        p(f"s_lshl_b32 {s(S_T0)}, {s(S_MT2)}, 2")
        p(f"s_add_u32 {s(S_T0)}, {s(S_T0)}, {tb}")
        p(f"s_mul_i32 {s(S_T0)}, {s(S_T0)}, 54")
        p(f"s_add_u32 {s(S_T0)}, {s(S_T0)}, {s(S_KS0)}")
        p(f"s_lshl_b32 {s(S_T0)}, {s(S_T0)}, 10")
        p(f"s_add_u32 {s(S_HB+tb)}, {s(S_T0)}, {WS_H2F}")

def main(p):
    p.c("---- GEMM2 main ----")
    tick(p, 1)
    srds(p, [(SRD_A, 'out')])
    def hload(ks):
        out = []
        for tb in range(4):
            out.append(f"buffer_load_dwordx4 {vr(BR+16*(ks%NRING)+4*tb,4)}, v6, {sr(SRD_WS,4)}, {s(S_HB+tb)} offen offset:{1024*(ks%4)}{SC}")
            if ks % 4 == 3: out.append(f"s_add_u32 {s(S_HB+tb)}, {s(S_HB+tb)}, 4096")
        return out
    for ks in range(NRING):
        for x in hload(ks): p(x)
    tick(p, 2)
    lab_skip = p.newlabel('L_g2skip')
    for ks in range(14):
        last_issued = min(ks + NRING - 1, 13)
        if ks == 13:
            p(f"s_cmp_ge_u32 {s(S_WAVE)}, 2")
            p(f"s_cbranch_scc1 {lab_skip}")
        p(f"s_waitcnt vmcnt({4*(last_issued-ks)})")
        if ks == 0: tick(p, 3)
        if ks == 7: tick(p, 4)
        mm = []
        for j in range(5):
            for tb in range(4):
                d = ar(AACC + 4*(4*j+tb), 4)
                c = '0' if ks == 0 else d
                mm.append(f"v_mfma_f32_16x16x32_bf16 {d}, {wreg(5*ks+j)}, {vr(BR+16*(ks%NRING)+4*tb,4)}, {c}")
        for x in mm: p(x)
        if ks + NRING < 14:
            for x in hload(ks + NRING): p(x)
    p.label(lab_skip)
    p("s_waitcnt vmcnt(0)")
    tick(p, 5)
    p(f"s_mul_i32 {s(S_T0)}, {s(S_WAVE)}, 20480")
    p(f"v_add_u32 v2, {s(S_T0)}, v6")
    p("s_nop 7")
    for j in range(5):
        for tb in range(4):
            p(f"ds_write_b128 v2, {ar(AACC + 4*(4*j+tb), 4)} offset:{(tb*5+j)*1024}")
    p(f"s_mul_i32 {s(S_T0)}, {s(S_WAVE)}, 5120")
    p(f"v_add_u32 v2, {s(S_T0)}, v6")
    p("v_add_u32 v4, 40960, v2")
    p("v_and_b32 v8, 15, v1")
    p("v_mul_u32_u24 v5, 1280, v8")
    p("v_lshl_add_u32 v5, v7, 3, v5")
    p(f"s_lshl_b32 {s(S_T0)}, {s(S_MT2)}, 2")
    p(f"s_add_u32 {s(S_T0)}, {s(S_T0)}, {s(S_WAVE)}")
    p(f"s_mul_i32 {s(S_T0)}, {s(S_T0)}, {16*1280}")
    p(f"s_mul_i32 {s(S_T1)}, {s(S_NT2)}, 160")
    p(f"s_add_u32 {s(S_T0)}, {s(S_T0)}, {s(S_T1)}")
    p("s_waitcnt lgkmcnt(0)")
    p("s_barrier")
    tick(p, 6)
    RD = 40
    for j in range(5):
        for w in range(4):
            base = 2 if w < 2 else 4
            p(f"ds_read_b128 {vr(RD+16*j+4*w,4)}, {v(base)} offset:{(w%2)*20480 + j*1024}")
    F = 130
    for j in range(5):
        p(f"s_waitcnt lgkmcnt({min(15, 4*(4-j))})")
        r = RD + 16*j
        for i in range(4):
            p(f"v_add_f32 {v(r+i)}, {v(r+i)}, {v(r+4+i)}")
            p(f"v_add_f32 {v(r+8+i)}, {v(r+8+i)}, {v(r+12+i)}")
        for i in range(4): p(f"v_add_f32 {v(r+i)}, {v(r+i)}, {v(r+8+i)}")
        unpack(p, F, F+1, X1R+2*j); unpack(p, F+2, F+3, X1R+2*j+1)
        for i in range(4): p(f"v_fma_f32 {v(F+i)}, {v(GB+4*j+i)}, {v(r+i)}, {v(F+i)}")
        p(f"v_cvt_pk_bf16_f32 {v(r)}, {v(F)}, {v(F+1)}")
        p(f"v_cvt_pk_bf16_f32 {v(r+1)}, {v(F+2)}, {v(F+3)}")
        p(f"buffer_store_dwordx2 {vr(r,2)}, v5, {sr(SRD_A,4)}, {s(S_T0)} offen offset:{32*j}")
    tick(p, 7)
    if common.STAMPS:
        p("s_waitcnt vmcnt(0)"); tick(p, 8); dump_ticks(p, 9, 16, 130)
```

```python
import sys
sys.path.insert(0, 'work')
from dsl import *
import struct, math

L, D, NMODE, DF = 2048, 640, 128, 1728
KA = dict(x=0, logA=8, Aim=16, Cre=24, Cim=32, logdt=40, dskip=48, Bx=56, Wg=64, Wu=72, Wd=80, c=88, wmod=96, out=104, dbg=112, ws=120)
WS_BYTES = 0x2000000
NB = dict(x=L*D*2, logA=D*NMODE*2, Aim=D*NMODE*2, Cre=D*NMODE*2, Cim=D*NMODE*2, logdt=D*2, dskip=D*2,
          Wg=D*DF*2, Wu=D*DF*2, Wd=DF*D*2, c=D*2, wmod=D*6*D*2, out=L*D*2, dbg=256, ws=WS_BYTES)
SLAB = 41*1024
WS_NF   = 0x0000000
WS_X1F  = 0x0280000
WS_MODP = 0x0500000
WS_SYNC = 0x0520000
WS_WPF  = 0x0600000
WS_WDF  = 0x0A60000
WS_H2F  = 0x0C80000
WS_STAMP = 0x1F00000
SC = ' sc1'
LN_LINE, MOD_LINE, CONV_LINE, WP_LINE, WD_LINE, C_LINE = 0, 8, 16, 24, 32, 40

S_WAVE = 4
S_T0 = 5; S_T1 = 6; S_T2 = 7
SRD_WS = 8
SRD_A = 12; SRD_B = 16; SRD_C = 20; SRD_D = 24; SRD_E = 28
S_EX = 36
KARG = 64
LOG2E = 1.4426950408889634
VTICK = 255

class Cfg:
    stamps = False
    fused = True
cfg = Cfg()

def f2u(x): return struct.unpack('<I', struct.pack('<f', x))[0]
def fl(x): return hex(f2u(x))
def ptr(name): return KARG + KA[name]//4

def mksrd(p, srd, name):
    p(f"s_mov_b32 {s(srd)}, {s(ptr(name))}")
    p(f"s_mov_b32 {s(srd+1)}, {s(ptr(name)+1)}")
    p(f"s_mov_b32 {s(srd+2)}, {hex(NB[name])}")
    p(f"s_mov_b32 {s(srd+3)}, 0x00020000")

def entry(p, nwg=256):
    p(f"s_cmp_ge_u32 s2, {nwg}")
    p("s_cbranch_scc1 L_exit")
    p(f"s_load_dwordx16 {sr(KARG,16)}, s[0:1], 0")
    p(f"s_load_dwordx16 {sr(KARG+16,16)}, s[0:1], 64")
    p("v_lshrrev_b32 v1, 6, v0")
    p("s_nop 0")
    p(f"v_readfirstlane_b32 {s(S_WAVE)}, v1")
    p("v_and_b32 v1, 63, v0")
    if cfg.stamps: p(f"v_mov_b32 v{VTICK}, 0")
    p("s_waitcnt lgkmcnt(0)")
    mksrd(p, SRD_WS, 'ws')

def row16_sum(p, r):
    for k in (8, 4, 2, 1):
        p(f"v_add_f32_dpp {v(r)}, {v(r)}, {v(r)} row_ror:{k} row_mask:0xf bank_mask:0xf")

def cross_row_sum(p, r, t):
    p(f"v_mov_b32 {v(t)}, {v(r)}")
    p(f"v_permlane16_swap_b32 {v(t)}, {v(r)}")
    p(f"v_add_f32 {v(r)}, {v(r)}, {v(t)}")
    p(f"v_mov_b32 {v(t)}, {v(r)}")
    p(f"v_permlane32_swap_b32 {v(t)}, {v(r)}")
    p(f"v_add_f32 {v(r)}, {v(r)}, {v(t)}")

def unpack(p, lo, hi, src):
    p(f"v_lshlrev_b32 {v(lo)}, 16, {v(src)}")
    p(f"v_and_b32 {v(hi)}, 0xffff0000, {v(src)}")

def rbf(p, r):
    p(f"v_cvt_pk_bf16_f32 {v(r)}, {v(r)}, {v(r)}")
    p(f"v_lshlrev_b32 {v(r)}, 16, {v(r)}")

NTICK = [0]
TICKNAMES = {}
def tick(p, name):
    if not cfg.stamps: return
    if name not in TICKNAMES: TICKNAMES[name] = len(TICKNAMES)
    k = TICKNAMES[name]
    assert k < 64
    p("s_memtime s[96:97]")
    p("s_waitcnt lgkmcnt(0)")
    p(f"v_writelane_b32 v{VTICK}, s96, {k}")
def dump_ticks(p):
    if not cfg.stamps: return
    p("s_waitcnt vmcnt(0)")
    tick(p, 'end')
    p("s_memrealtime s[96:97]")
    p("s_waitcnt lgkmcnt(0)")
    p(f"v_writelane_b32 v{VTICK}, s96, 63")
    p("s_lshl_b32 s96, s2, 2")
    p(f"s_add_u32 s96, s96, {s(S_WAVE)}")
    p("s_lshl_b32 s96, s96, 8")
    p(f"s_add_u32 s96, s96, {WS_STAMP}")
    p("v_lshlrev_b32 v2, 2, v1")
    p(f"buffer_store_dword v{VTICK}, v2, {sr(SRD_WS,4)}, s96 offen")

def wave0_begin(p):
    lab = p.newlabel('L_w0')
    p(f"s_cmp_eq_u32 {s(S_WAVE)}, 0")
    p(f"s_cbranch_scc0 {lab}")
    return lab

def arrive(p, line_sgpr, t0, t1, guard=None):
    if not cfg.fused:
        return
    p("s_waitcnt vmcnt(0)")
    p("s_barrier")
    lab = wave0_begin(p)
    p(f"s_lshl_b32 s96, {s(line_sgpr)}, 7")
    p(f"s_add_u32 s96, s96, {WS_SYNC}")
    p(f"v_mov_b32 {v(t0)}, 1")
    p(f"v_mov_b32 {v(t1)}, 0")
    p(f"s_mov_b64 {sr(S_EX,2)}, exec")
    p("s_mov_b64 exec, 1")
    p(f"buffer_atomic_add {v(t0)}, {v(t1)}, {sr(SRD_WS,4)}, s96 offen sc1")
    p(f"s_mov_b64 exec, {sr(S_EX,2)}")
    p.label(lab)

SPIN_MAX = 1 << 16
def poll(p, srd, addr_v, nl, cond_fn, tmp, soff='0'):
    lab = p.newlabel('L_poll'); done = p.newlabel('L_polld')
    p(f"s_mov_b64 {sr(S_EX,2)}, exec")
    p(f"s_mov_b64 exec, {hex((1 << nl) - 1)}")
    p("s_mov_b32 s97, 0")
    p.label(lab)
    p(f"buffer_load_dword {v(tmp)}, {v(addr_v)}, {sr(srd,4)}, {soff} offen sc1")
    p("s_waitcnt vmcnt(0)")
    cond_fn()
    p(f"s_cbranch_vccz {done}")
    p("s_add_u32 s97, s97, 1")
    p(f"s_cmp_lt_u32 s97, {SPIN_MAX}")
    p(f"s_cbranch_scc1 {lab}")
    p.label(done)
    p(f"s_mov_b64 exec, {sr(S_EX,2)}")

def wait_lines(p, specs, t0, t1, t2):
    if not cfg.fused:
        p("s_barrier"); return
    lab = wave0_begin(p)
    if specs[0][0] == 's':
        _, sg, tgt = specs[0]
        p(f"s_lshl_b32 s96, {s(sg)}, 7")
        p(f"s_add_u32 s96, s96, {WS_SYNC}")
        p(f"v_mov_b32 {v(t0)}, s96")
        p(f"v_mov_b32 {v(t1)}, {tgt}")
        nl = 1
    else:
        lines = []; tg = []
        for l0, ts in specs:
            for i, t in enumerate(ts): lines.append(l0 + i); tg.append(t)
        nl = len(lines)
        p(f"v_mov_b32 {v(t0)}, {WS_SYNC}")
        p(f"v_mov_b32 {v(t1)}, 0")
        contiguous = all(lines[i] == lines[0] + i for i in range(nl))
        assert contiguous
        p(f"v_lshlrev_b32 {v(t2)}, 7, v1")
        p(f"v_add_u32 {v(t0)}, {WS_SYNC + 128*lines[0]}, {v(t2)}")
        base = max(set(tg), key=tg.count)
        p(f"v_mov_b32 {v(t1)}, {base}")
        for i, t in enumerate(tg):
            if t != base:
                p(f"s_mov_b32 s96, {t}")
                p(f"v_writelane_b32 {v(t1)}, s96, {i}")
    poll(p, SRD_WS, t0, nl, lambda: p(f"v_cmp_lt_u32 vcc, {v(t2)}, {v(t1)}"), t2)
    p.label(lab)
    p("s_barrier")

def init_sync(p):
    if not cfg.fused: return
    for k in range(4): p(f"v_mov_b32 {v(4+k)}, 0")
    p("v_lshlrev_b32 v2, 4, v0")
    p(f"s_mov_b32 s96, {WS_SYNC}")
    p(f"buffer_store_dwordx4 v[4:7], v2, {sr(SRD_WS,4)}, s96 offen sc1")
    p(f"s_add_u32 s96, s96, 4096")
    p(f"buffer_store_dwordx4 v[4:7], v2, {sr(SRD_WS,4)}, s96 offen sc1")
    p("s_waitcnt vmcnt(0)")
    p("s_barrier")
    lab = wave0_begin(p)
    mksrd(p, SRD_E, 'dbg')
    p("v_mov_b32 v4, 1")
    p("v_mov_b32 v5, 0")
    p(f"s_mov_b64 {sr(S_EX,2)}, exec")
    p("s_mov_b64 exec, 1")
    p(f"buffer_store_dword v4, v5, {sr(SRD_E,4)}, 0 offen sc1")
    p(f"s_mov_b64 exec, {sr(S_EX,2)}")
    p.label(lab)

def wait_init(p, t0, t1):
    if not cfg.fused: return
    lab = wave0_begin(p)
    mksrd(p, SRD_E, 'dbg')
    p(f"v_mov_b32 {v(t0)}, 0")
    poll(p, SRD_E, t0, 1, lambda: p(f"v_cmp_eq_u32 vcc, 0, {v(t1)}"), t1)
    p.label(lab)

def kernel_text(name, body, vgpr=256, agpr=256, sgpr=102):
    acc = (vgpr + 3)//4*4
    return f""".text
.globl {name}
.p2align 8
.type {name},@function
{name}:
{body}
.section .rodata,"a"
.p2align 6
.amdhsa_kernel {name}
  .amdhsa_next_free_vgpr {acc + agpr if agpr else vgpr}
  .amdhsa_next_free_sgpr {sgpr}
  .amdhsa_accum_offset {acc}
  .amdhsa_group_segment_fixed_size 0
  .amdhsa_kernarg_size 128
  .amdhsa_user_sgpr_count 2
  .amdhsa_user_sgpr_kernarg_segment_ptr 1
  .amdhsa_system_sgpr_workgroup_id_x 1
.end_amdhsa_kernel
"""
```

```python
from common import *

LX = 10; LF = 30
def ln1_loads(p):
    p.c("---- LN1 loads ----")
    mksrd(p, SRD_A, 'x')
    p("v_lshrrev_b32 v2, 4, v1")
    p("v_and_b32 v3, 15, v1")
    p(f"s_lshl_b32 {s(S_T0)}, s2, 4")
    p(f"s_lshl_b32 {s(S_T1)}, {s(S_WAVE)}, 2")
    p(f"s_add_u32 {s(S_T0)}, {s(S_T0)}, {s(S_T1)}")
    p(f"s_mul_i32 {s(S_T0)}, {s(S_T0)}, 1280")
    p("v_mul_u32_u24 v4, 1280, v2")
    p("v_lshl_add_u32 v4, v3, 3, v4")
    for q in range(10):
        p(f"buffer_load_dwordx2 {vr(LX+2*q,2)}, v4, {sr(SRD_A,4)}, {s(S_T0)} offen offset:{128*q}")

def ln1_compute(p, nafter):
    p.c("---- LN1 compute ----")
    X, F = LX, LF
    p("v_lshrrev_b32 v2, 4, v1")
    p("v_and_b32 v3, 15, v1")
    p(f"s_lshl_b32 {s(S_T1)}, {s(S_WAVE)}, 2")
    p("v_mul_u32_u24 v5, 136, v3")
    p(f"v_add_u32 v6, {s(S_T1)}, v2")
    p("v_lshl_add_u32 v5, v6, 3, v5")
    p(f"s_waitcnt vmcnt({nafter})")
    tick(p, 'ln1_loaded')
    for k in range(20): unpack(p, F+2*k, F+2*k+1, X+k)
    p(f"v_add_f32 v70, {v(F)}, {v(F+1)}")
    p(f"v_add_f32 v71, {v(F+2)}, {v(F+3)}")
    for k in range(4, 40, 2):
        p(f"v_add_f32 v70, v70, {v(F+k)}")
        p(f"v_add_f32 v71, v71, {v(F+k+1)}")
    p("v_add_f32 v70, v70, v71")
    row16_sum(p, 70)
    p(f"v_mul_f32 v70, {fl(1.0/640)}, v70")
    for k in range(40): p(f"v_sub_f32 {v(F+k)}, {v(F+k)}, v70")
    p(f"v_mul_f32 v72, {v(F)}, {v(F)}")
    p(f"v_mul_f32 v73, {v(F+1)}, {v(F+1)}")
    for k in range(2, 40, 2):
        p(f"v_fmac_f32 v72, {v(F+k)}, {v(F+k)}")
        p(f"v_fmac_f32 v73, {v(F+k+1)}, {v(F+k+1)}")
    p("v_add_f32 v72, v72, v73")
    row16_sum(p, 72)
    p(f"s_mov_b32 {s(S_T2)}, {fl(1e-5)}")
    p(f"v_mov_b32 v73, {fl(1.0/640)}")
    p(f"v_fma_f32 v72, v72, v73, {s(S_T2)}")
    p("v_rsq_f32 v72, v72")
    for k in range(0, 40, 2):
        p(f"v_pk_mul_f32 {vr(F+k,2)}, {vr(F+k,2)}, v[72:73] op_sel_hi:[1,0]")
    for k in range(20): p(f"v_cvt_pk_bf16_f32 {v(X+k)}, {v(F+2*k)}, {v(F+2*k+1)}")
    tick(p, 'ln1_math')
    for q in range(10): p(f"ds_write_b64 v5, {vr(X+2*q,2)} offset:{2176*q}")
    p("v_lshrrev_b32 v6, 4, v1")
    p("v_bfe_u32 v7, v1, 2, 2")
    p("v_and_b32 v8, 3, v1")
    p("v_lshrrev_b32 v9, 1, v8")
    p("v_lshl_add_u32 v9, v6, 1, v9")
    p(f"s_mul_i32 {s(S_T1)}, {s(S_WAVE)}, 40")
    p(f"v_add_u32 v9, {s(S_T1)}, v9")
    p("v_mul_u32_u24 v9, 136, v9")
    p("v_and_b32 v70, 1, v8")
    p("v_lshl_add_u32 v70, v70, 3, v7")
    p("v_lshl_add_u32 v9, v70, 3, v9")
    p("v_lshrrev_b32 v70, 1, v7")
    p("v_lshl_add_u32 v70, v6, 1, v70")
    p("v_lshlrev_b32 v70, 7, v70")
    p("v_lshl_add_u32 v70, v8, 5, v70")
    p("v_and_b32 v71, 1, v7")
    p("v_lshl_add_u32 v70, v71, 4, v70")
    p(f"s_mul_i32 {s(S_T0)}, s2, 20480")
    p(f"s_mul_i32 {s(S_T1)}, {s(S_WAVE)}, 5120")
    p(f"s_add_u32 {s(S_T0)}, {s(S_T0)}, {s(S_T1)}")
    if WS_NF: p(f"s_add_u32 {s(S_T0)}, {s(S_T0)}, {WS_NF}")
    p(f"s_add_u32 {s(S_T1)}, {s(S_T0)}, 4096")
    p("s_waitcnt lgkmcnt(0)")
    p("s_barrier")
    for it in range(5):
        p(f"ds_read_b64_tr_b16 {vr(X+4*it,2)}, v9 offset:{1088*it}")
        p(f"ds_read_b64_tr_b16 {vr(X+4*it+2,2)}, v9 offset:{1088*it+32}")
    for it in range(5):
        p(f"s_waitcnt lgkmcnt({8-2*it})")
        if it < 4: p(f"buffer_store_dwordx4 {vr(X+4*it,4)}, v70, {sr(SRD_WS,4)}, {s(S_T0)} offen offset:{1024*it}{SC}")
        else:      p(f"buffer_store_dwordx4 {vr(X+4*it,4)}, v70, {sr(SRD_WS,4)}, {s(S_T1)} offen{SC}")
    p("s_barrier")

MS0, MS1 = 32, 33
MC = 10; MW = 20
def mod_loads(p):
    p.c("---- mod loads ----")
    mksrd(p, SRD_A, 'wmod'); mksrd(p, SRD_B, 'c')
    S0, S1, S2 = MS0, MS1, 34
    p(f"s_sub_u32 {s(S0)}, s2, 136")
    p(f"s_lshr_b32 {s(S1)}, {s(S0)}, 1")
    p(f"s_and_b32 {s(S0)}, {s(S0)}, 1")
    p(f"s_mul_i32 {s(S2)}, {s(S0)}, 320")
    p(f"s_mul_i32 {s(S_T0)}, {s(S_WAVE)}, 80")
    p(f"s_add_u32 {s(S2)}, {s(S2)}, {s(S_T0)}")
    p(f"s_lshl_b32 {s(S_T1)}, {s(S2)}, 1")
    p(f"s_mul_i32 {s(S_T0)}, {s(S2)}, 7680")
    p(f"s_lshl_b32 {s(S_T2)}, {s(S1)}, 7")
    p(f"s_add_u32 {s(S_T0)}, {s(S_T0)}, {s(S_T2)}")
    p("v_lshrrev_b32 v2, 3, v1")
    p("v_and_b32 v3, 7, v1")
    p("v_mul_u32_u24 v4, 7680, v2")
    p("v_lshl_add_u32 v4, v3, 4, v4")
    p("v_lshlrev_b32 v5, 1, v2")
    for i in range(10):
        p(f"buffer_load_ushort {v(MC+i)}, v5, {sr(SRD_B,4)}, {s(S_T1)} offen offset:{16*i}")
    for i in range(10):
        p(f"buffer_load_dwordx4 {vr(MW+4*i,4)}, v4, {sr(SRD_A,4)}, {s(S_T0)} offen")
        if i < 9: p(f"s_add_u32 {s(S_T0)}, {s(S_T0)}, {8*7680}")

def mod_compute(p, nafter):
    p.c("---- mod compute ----")
    S0, S1 = MS0, MS1
    Cc, W = MC, MW; ACC = 60; T = 70
    p(f"s_waitcnt vmcnt({min(63, 10+nafter)})")
    for i in range(10):
        c = Cc + i
        p(f"v_lshlrev_b32 {v(c)}, 16, {v(c)}")
        p(f"v_mul_f32 {v(T)}, {fl(-LOG2E)}, {v(c)}")
        p(f"v_exp_f32 {v(T)}, {v(T)}")
        p(f"v_add_f32 {v(T)}, 1.0, {v(T)}")
        p(f"v_rcp_f32 {v(T)}, {v(T)}")
        p(f"v_mul_f32 {v(c)}, {v(c)}, {v(T)}")
        rbf(p, c)
    for i in range(10):
        p(f"s_waitcnt vmcnt({min(63, 9-i+nafter)})")
        for k in range(4):
            unpack(p, T, T+1, W+4*i+k)
            if i == 0:
                p(f"v_pk_mul_f32 {vr(ACC+2*k,2)}, {vr(T,2)}, {vr(Cc,2)} op_sel_hi:[1,0]")
            else:
                c = Cc + i
                if c % 2 == 0:
                    p(f"v_pk_fma_f32 {vr(ACC+2*k,2)}, {vr(T,2)}, {vr(c,2)}, {vr(ACC+2*k,2)} op_sel_hi:[1,0,1]")
                else:
                    p(f"v_pk_fma_f32 {vr(ACC+2*k,2)}, {vr(T,2)}, {vr(c-1,2)}, {vr(ACC+2*k,2)} op_sel:[0,1,0] op_sel_hi:[1,1,1]")
    tick(p, 'mod_acc')
    for k in range(8):
        p(f"v_add_f32_dpp {v(ACC+k)}, {v(ACC+k)}, {v(ACC+k)} row_ror:8 row_mask:0xf bank_mask:0xf")
    for k in range(8): cross_row_sum(p, ACC+k, T + (k & 1))
    p("v_and_b32 v3, 7, v1")
    p(f"s_lshl_b32 {s(S_T0)}, {s(S_WAVE)}, 8")
    p("v_lshlrev_b32 v6, 5, v3")
    p(f"v_add_u32 v6, {s(S_T0)}, v6")
    p(f"s_mov_b64 {sr(S_EX,2)}, exec")
    p("s_mov_b64 exec, 0xff")
    p(f"ds_write_b128 v6, {vr(ACC,4)}")
    p(f"ds_write_b128 v6, {vr(ACC+4,4)} offset:16")
    p(f"s_mov_b64 exec, {sr(S_EX,2)}")
    p("s_waitcnt lgkmcnt(0)")
    p("s_barrier")
    lab = wave0_begin(p)
    p("v_lshlrev_b32 v6, 2, v1")
    for w in range(4): p(f"ds_read_b32 {v(T+w)}, v6 offset:{256*w}")
    p(f"s_mul_i32 {s(S0)}, {s(S0)}, 15360")
    p(f"s_lshl_b32 {s(S1)}, {s(S1)}, 8")
    p(f"s_add_u32 {s(S0)}, {s(S0)}, {s(S1)}")
    p(f"s_add_u32 {s(S0)}, {s(S0)}, {WS_MODP}")
    p("s_waitcnt lgkmcnt(0)")
    p(f"v_add_f32 {v(T)}, {v(T)}, {v(T+1)}")
    p(f"v_add_f32 {v(T+2)}, {v(T+2)}, {v(T+3)}")
    p(f"v_add_f32 {v(T)}, {v(T)}, {v(T+2)}")
    p(f"buffer_store_dword {v(T)}, v6, {sr(SRD_WS,4)}, {s(S0)} offen{SC}")
    p.label(lab)
    p("s_barrier")
```

```python
from common import *
from phK import KC_STRIDE, KC_BYTES, U_OFF, U_PAD, WSTRIDE, S_G, S_D, S_LB

XR = 200
def conv_xloads(p):
    mksrd(p, SRD_A, 'x')
    p("v_lshrrev_b32 v2, 4, v0")
    p("v_and_b32 v3, 15, v0")
    p("v_lshl_add_u32 v2, v2, 5, v3")
    p("v_mul_u32_u24 v2, 1280, v2")
    p("v_add_u32 v3, 20480, v2")
    p(f"s_lshl_b32 {s(S_T0)}, {s(S_G)}, 3")
    for it in range(4):
        p(f"buffer_load_dwordx2 {vr(XR+4*it,2)}, v2, {sr(SRD_A,4)}, {s(S_T0)} offen")
        p(f"buffer_load_dwordx2 {vr(XR+4*it+2,2)}, v3, {sr(SRD_A,4)}, {s(S_T0)} offen")
        if it < 3: p(f"s_add_u32 {s(S_T0)}, {s(S_T0)}, {512*1280}")

def conv(p):
    p.c("---- conv ----")
    mksrd(p, SRD_B, 'dskip')
    SA, C1, GA, DS = 10, 11, 12, 13
    T = 14
    NR = 20
    p("v_lshrrev_b32 v5, 3, v0")
    p("v_mul_u32_u24 v6, 20480, v5")
    p("v_and_b32 v7, 7, v0")
    p("v_lshl_add_u32 v6, v7, 4, v6")
    p(f"s_lshl_b32 {s(S_T0)}, {s(S_G)}, 7")
    if WS_NF: p(f"s_add_u32 {s(S_T0)}, {s(S_T0)}, {WS_NF}")
    p("v_bfe_u32 v2, v0, 1, 2")
    p(f"s_lshl_b32 {s(S_T1)}, {s(S_G)}, 4")
    p(f"s_add_u32 {s(S_T1)}, {s(S_T1)}, {WS_MODP}")
    p("v_lshlrev_b32 v3, 2, v2")
    p(f"buffer_load_dword {v(SA)}, v3, {sr(SRD_WS,4)}, {s(S_T1)} offen{SC}")
    p(f"buffer_load_dword {v(C1)}, v3, {sr(SRD_WS,4)}, {s(S_T1)} offen offset:2560{SC}")
    p(f"s_add_u32 {s(S_T2)}, {s(S_T1)}, 15360")
    p(f"buffer_load_dword {v(T)}, v3, {sr(SRD_WS,4)}, {s(S_T2)} offen{SC}")
    p(f"buffer_load_dword {v(T+1)}, v3, {sr(SRD_WS,4)}, {s(S_T2)} offen offset:2560{SC}")
    p(f"s_lshl_b32 s3, {s(S_WAVE)}, 2")
    p("v_mov_b32 v4, s3")
    p(f"s_add_u32 {s(S_T1)}, {s(S_T1)}, 5120")
    p(f"s_add_u32 {s(S_T2)}, {s(S_T2)}, 5120")
    p(f"buffer_load_dword {v(GA)}, v4, {sr(SRD_WS,4)}, {s(S_T1)} offen{SC}")
    p(f"buffer_load_dword {v(T+2)}, v4, {sr(SRD_WS,4)}, {s(S_T2)} offen{SC}")
    p(f"s_lshl_b32 {s(S_T2)}, {s(S_D)}, 1")
    p("v_mov_b32 v4, 0")
    p(f"buffer_load_ushort {v(DS)}, v4, {sr(SRD_B,4)}, {s(S_T2)} offen")
    tk_mod = p.vt()
    tks = []
    for it in range(4):
        p(f"buffer_load_dwordx4 {vr(NR+4*it,4)}, v6, {sr(SRD_WS,4)}, {s(S_T0)} offen{SC}")
        tks.append(p.vt())
        if it < 3: p(f"s_add_u32 {s(S_T0)}, {s(S_T0)}, {32*20480}")
    p(f"v_mul_u32_u24 v8, {WSTRIDE}, v2")
    p("v_lshl_add_u32 v8, v5, 5, v8")
    p("v_and_b32 v9, 1, v0")
    p("v_lshl_add_u32 v8, v9, 4, v8")
    p(f"v_add_u32 v8, {U_OFF + U_PAD}, v8")
    for k in range(4): p(f"v_mov_b32 {v(40+k)}, 0")
    p("v_lshlrev_b32 v9, 4, v1")
    p(f"v_add_u32 v9, {s(S_LB)}, v9")
    p(f"s_mov_b64 {sr(S_EX,2)}, exec")
    p("s_mov_b64 exec, 0x3fffffff")
    p(f"ds_write_b128 v9, {vr(40,4)} offset:{U_OFF}")
    p(f"s_mov_b64 exec, {sr(S_EX,2)}")
    AA, AB = 4, 5
    p("v_lshrrev_b32 v6, 4, v1")
    p("v_bfe_u32 v7, v1, 2, 2")
    p("v_and_b32 v9, 3, v1")
    p(f"v_mul_u32_u24 {v(AA)}, {KC_STRIDE}, v7")
    p(f"v_lshl_add_u32 {v(AA)}, v9, 3, {v(AA)}")
    p("v_lshlrev_b32 v7, 4, v6")
    p(f"v_sub_u32 {v(AA)}, {v(AA)}, v7")
    p(f"s_add_u32 {s(S_T0)}, {s(S_LB)}, 56")
    p(f"v_add_u32 {v(AA)}, {s(S_T0)}, {v(AA)}")
    p("v_and_b32 v9, 15, v1")
    p(f"v_lshlrev_b32 {v(AB)}, 5, v9")
    p(f"v_add_u32 {v(AB)}, {v(AB)}, v7")
    p(f"s_add_u32 {s(S_T0)}, {s(S_LB)}, {U_OFF + 448}")
    p(f"v_add_u32 {v(AB)}, {s(S_T0)}, {v(AB)}")
    ACC = 160
    for k in range(32): p(f"v_mov_b32 {v(ACC+k)}, 0")
    FA = [20, 84]; FB = [52, 116]
    p.wait_vm(tk_mod)
    tick(p, 'conv_mod')
    p(f"v_add_f32 {v(SA)}, {v(SA)}, {v(T)}"); rbf(p, SA)
    p(f"v_add_f32 {v(C1)}, {v(C1)}, {v(T+1)}"); rbf(p, C1)
    p(f"v_add_f32 {v(C1)}, 1.0, {v(C1)}"); rbf(p, C1)
    p(f"v_add_f32 {v(GA)}, {v(GA)}, {v(T+2)}"); rbf(p, GA)
    p(f"v_lshlrev_b32 {v(DS)}, 16, {v(DS)}")
    F = 44
    for it in range(4):
        p.wait_vm(tks[it])
        for k in range(4): unpack(p, F+2*k, F+2*k+1, NR+4*it+k)
        for k in range(8): p(f"v_fma_f32 {v(F+k)}, {v(F+k)}, {v(C1)}, {v(SA)}")
        for k in range(4): p(f"v_cvt_pk_bf16_f32 {v(NR+4*it+k)}, {v(F+2*k)}, {v(F+2*k+1)}")
        p(f"ds_write_b128 v8, {vr(NR+4*it,4)} offset:{1024*it}")
    p("s_waitcnt lgkmcnt(0)")
    p("s_barrier")
    tick(p, 'conv_fill')
    def loads(st):
        out = []
        for J in range(8):
            out.append(f"ds_read_b64_tr_b16 {vr(FA[st]+4*J,2)}, {v(AA)} offset:{8+512*J}")
            out.append(f"ds_read_b64_tr_b16 {vr(FA[st]+4*J+2,2)}, {v(AA)} offset:{512*J}")
            out.append(f"ds_read_b128 {vr(FB[st]+4*J,4)}, {v(AB)} offset:{512*J}")
        return out
    def step_addr():
        return [f"v_add_u32 {v(AA)}, 64, {v(AA)}", f"v_subrev_u32 {v(AB)}, 64, {v(AB)}"]
    def mfmas(st):
        return [f"v_mfma_f32_16x16x32_bf16 {vr(ACC+4*t,4)}, {vr(FA[st]+4*J,4)}, {vr(FB[st]+4*(t-J),4)}, {vr(ACC+4*t,4)}"
                for J in range(8) for t in range(J, 8)]
    for x in loads(0): p(x)
    SCNT = 43
    p(f"s_mov_b32 {s(SCNT)}, 0")
    lab = p.newlabel('L_conv')
    p.loop_begin(lab)
    for st in range(2):
        for x in step_addr(): p(x)
        p("s_waitcnt lgkmcnt(0)")
        for x in interleave(mfmas(st), loads(1-st), per=1.0): p(x)
    p(f"s_add_u32 {s(SCNT)}, {s(SCNT)}, 1")
    p(f"s_cmp_lt_u32 {s(SCNT)}, 4")
    p(f"s_cbranch_scc1 {lab}")
    p.loop_end()
    p("s_waitcnt lgkmcnt(0)")
    tick(p, 'conv_main')
    p("v_and_b32 v6, 15, v1")
    p("v_lshrrev_b32 v7, 4, v1")
    p("v_lshlrev_b32 v6, 5, v6")
    p("v_lshl_add_u32 v6, v7, 3, v6")
    p(f"s_add_u32 {s(S_T0)}, {s(S_LB)}, {U_OFF + U_PAD}")
    p(f"v_add_u32 v6, {s(S_T0)}, v6")
    H = 20
    for t in range(8): p(f"ds_read_b64 {vr(H+2*t,2)}, v6 offset:{512*t}")
    for t in range(8):
        p("s_waitcnt lgkmcnt(7)")
        unpack(p, F, F+1, H+2*t); unpack(p, F+2, F+3, H+2*t+1)
        for i in range(4): p(f"v_fma_f32 {v(F+i)}, {v(F+i)}, {v(DS)}, {v(ACC+4*t+i)}")
        for i in range(4): p(f"v_mul_f32 {v(F+i)}, {v(GA)}, {v(F+i)}")
        p(f"v_cvt_pk_bf16_f32 {v(H+2*t)}, {v(F)}, {v(F+1)}")
        p(f"v_cvt_pk_bf16_f32 {v(H+2*t+1)}, {v(F+2)}, {v(F+3)}")
        p(f"ds_write_b64 v6, {vr(H+2*t,2)} offset:{512*t}")
    p("v_lshrrev_b32 v6, 4, v0")
    p("v_bfe_u32 v7, v1, 2, 2")
    p("v_and_b32 v9, 3, v1")
    p(f"v_mul_u32_u24 v8, {WSTRIDE}, v7")
    p("v_lshl_add_u32 v8, v6, 6, v8")
    p("v_lshl_add_u32 v8, v9, 3, v8")
    p(f"v_add_u32 v8, {U_OFF + U_PAD}, v8")
    p("v_mul_u32_u24 v6, 40960, v6")
    p("v_and_b32 v9, 15, v1")
    p("v_lshl_add_u32 v6, v9, 4, v6")
    p(f"s_lshl_b32 {s(S_T0)}, {s(S_G)}, 8")
    p(f"s_add_u32 {s(S_T0)}, {s(S_T0)}, {WS_X1F}")
    p("s_waitcnt lgkmcnt(0)")
    p("s_barrier")
    tick(p, 'conv_ep1')
    Y = 20
    for it in range(4):
        for hh in range(2):
            p(f"ds_read_b64_tr_b16 {vr(Y+4*it+2*hh,2)}, v8 offset:{1024*it+32*hh}")
    p("s_waitcnt vmcnt(0)")
    G2 = 52
    for it in range(4):
        p(f"s_waitcnt lgkmcnt({6-2*it})")
        for k in range(4):
            unpack(p, F, F+1, Y+4*it+k); unpack(p, F+2, F+3, XR+4*it+k)
            p(f"v_pk_add_f32 {vr(F,2)}, {vr(F,2)}, {vr(F+2,2)}")
            p(f"v_cvt_pk_bf16_f32 {v(G2+4*it+k)}, {v(F)}, {v(F+1)}")
        p(f"buffer_store_dwordx4 {vr(G2+4*it,4)}, v6, {sr(SRD_WS,4)}, {s(S_T0)} offen{SC}")
        if it < 3: p(f"s_add_u32 {s(S_T0)}, {s(S_T0)}, {16*40960}")
    tick(p, 'conv_ep2')
```

```python
from common import *
S_MT, S_NT, S_PB0, S_CNT, S_T = 44, 45, 46, 47, 48
S_SLOT = 50
S_WSRC = 51
S_H2 = 52
S_M0B = 53
S_MT2, S_NT2, S_KS0 = 54, 55, 56
S_WD = 57
XF = 10; ACC = [170, 186]; EXB = 202; K1 = 206; K2 = 207; S2V = 208
Q_ = 210; P_ = 214; GU = 218; OUT = 222; ONE = 226; TT = 228
VA, VN, VH2 = 2, 3, 5
RING = 6
WR = 0; ST1, ST2 = 24, 28
WDA = 24; NWDA = 58
SRD_W = SRD_A
C1 = -2.0*LOG2E*math.sqrt(2.0/math.pi)
C2 = C1*0.044715
XDEPTH = 16

def ids(p):
    p(f"s_and_b32 {s(S_T0)}, s2, 7")
    p(f"s_lshr_b32 {s(S_T1)}, s2, 3")
    p(f"s_and_b32 {s(S_MT)}, {s(S_T0)}, 1")
    p(f"s_lshl_b32 {s(S_MT)}, {s(S_MT)}, 3")
    p(f"s_and_b32 {s(S_T2)}, {s(S_T1)}, 7")
    p(f"s_add_u32 {s(S_MT)}, {s(S_MT)}, {s(S_T2)}")
    p(f"s_lshr_b32 {s(S_MT2)}, {s(S_T0)}, 1")
    p(f"s_lshl_b32 {s(S_MT2)}, {s(S_MT2)}, 3")
    p(f"s_add_u32 {s(S_MT2)}, {s(S_MT2)}, {s(S_T2)}")
    p(f"s_and_b32 {s(S_NT2)}, {s(S_T0)}, 1")
    p(f"s_lshl_b32 {s(S_NT2)}, {s(S_NT2)}, 2")
    p(f"s_lshr_b32 {s(S_T0)}, {s(S_T0)}, 1")
    p(f"s_lshr_b32 {s(S_T1)}, {s(S_T1)}, 3")
    p(f"s_add_u32 {s(S_NT2)}, {s(S_NT2)}, {s(S_T1)}")
    p(f"s_mul_i32 {s(S_PB0)}, {s(S_T0)}, 27")
    p(f"s_mul_i32 {s(S_T2)}, {s(S_T1)}, 7")
    p(f"s_add_u32 {s(S_PB0)}, {s(S_PB0)}, {s(S_T2)}")
    p(f"s_cmp_eq_u32 {s(S_T1)}, 3")
    p(f"s_cselect_b32 {s(S_CNT)}, 6, 7")
    p(f"s_lshl_b32 {s(S_T)}, {s(S_MT)}, 2")
    p(f"s_add_u32 {s(S_T)}, {s(S_T)}, {s(S_WAVE)}")
    p(f"s_mul_i32 {s(S_KS0)}, {s(S_WAVE)}, 14")
    p(f"s_cmp_eq_u32 {s(S_WAVE)}, 3")
    p(f"s_cselect_b32 {s(S_T0)}, 1, 0")
    p(f"s_sub_u32 {s(S_KS0)}, {s(S_KS0)}, {s(S_T0)}")
    for j in range(5):
        p(f"s_mul_i32 {s(S_T0)}, {s(S_NT2)}, 5")
        p(f"s_add_u32 {s(S_T0)}, {s(S_T0)}, {j}")
        p(f"s_mul_i32 {s(S_T0)}, {s(S_T0)}, 54")
        p(f"s_add_u32 {s(S_T0)}, {s(S_T0)}, {s(S_KS0)}")
        p(f"s_lshl_b32 {s(S_T0)}, {s(S_T0)}, 10")
        p(f"s_add_u32 {s(S_WD+j)}, {s(S_T0)}, {WS_WDF}")

def wd_reg(fi):
    from phD import WV
    return ar(WDA + 4*fi, 4) if fi < NWDA else vr(WV + 4*(fi-NWDA), 4)
def wd_load(fi):
    ksl, j = divmod(fi, 5)
    out = []
    if ksl % 4 == 0 and ksl > 0: out.append(f"s_add_u32 {s(S_WD+j)}, {s(S_WD+j)}, 4096")
    out.append(f"buffer_load_dwordx4 {wd_reg(fi)}, v6, {sr(SRD_WS,4)}, {s(S_WD+j)} offen offset:{1024*(ksl%4)}{SC}")
    return out

def dma_slab():
    out = []
    for k in range(11):
        pre = []
        if k == 0:
            pre.append(f"s_add_u32 m0, {s(S_SLOT)}, {s(S_M0B)}")
            pre.append(f"s_mov_b32 {s(S_T0)}, {s(S_WSRC)}")
        elif k % 4 == 0:
            pre.append("s_add_u32 m0, m0, 4096")
            pre.append(f"s_add_u32 {s(S_T0)}, {s(S_T0)}, 4096")
        pre.append(f"buffer_load_dwordx4 v6, {sr(SRD_W,4)}, {s(S_T0)} offen offset:{1024*(k%4)}{SC} lds")
        out.append(pre)
    return out

def advance_slab(p):
    p(f"s_add_u32 {s(S_WSRC)}, {s(S_WSRC)}, {SLAB}")
    p(f"s_add_u32 {s(S_SLOT)}, {s(S_SLOT)}, {SLAB}")
    p(f"s_cmp_eq_u32 {s(S_SLOT)}, {3*SLAB}")
    p(f"s_cselect_b32 {s(S_SLOT)}, 0, {s(S_SLOT)}")

def prefetch(p):
    p.c("---- GEMM1 prefetch ----")
    p(f"s_mov_b32 {s(SRD_W)}, {s(SRD_WS)}")
    p(f"s_mov_b32 {s(SRD_W+1)}, {s(SRD_WS+1)}")
    p(f"s_mov_b32 {s(SRD_W+2)}, {hex(NB['ws'])}")
    p(f"s_mov_b32 {s(SRD_W+3)}, 0x00020000")
    p("v_lshlrev_b32 v6, 4, v1")
    p(f"s_mul_i32 {s(S_M0B)}, {s(S_WAVE)}, 10240")
    p(f"s_mul_i32 {s(S_WSRC)}, {s(S_PB0)}, {SLAB}")
    p(f"s_add_u32 {s(S_WSRC)}, {s(S_WSRC)}, {s(S_M0B)}")
    p(f"s_add_u32 {s(S_WSRC)}, {s(S_WSRC)}, {WS_WPF}")
    p(f"s_mov_b32 {s(S_SLOT)}, 0")
    for sl in range(3):
        for grp in dma_slab():
            for x in grp: p(x)
        advance_slab(p)

def epilogue_ops(acc):
    L = []
    for jh in range(2):
        g = lambda i: acc + 4*jh + i
        u = lambda i: acc + 8 + 4*jh + i
        for i in range(4): L.append(f"v_mul_f32 {v(Q_+i)}, {v(g(i))}, {v(g(i))}")
        for i in range(4): L.append(f"v_fma_f32 {v(P_+i)}, {v(Q_+i)}, {v(K2)}, {v(K1)}")
        for i in range(4): L.append(f"v_mul_f32 {v(P_+i)}, {v(g(i))}, {v(P_+i)}")
        for i in range(4): L.append(f"v_exp_f32 {v(P_+i)}, {v(P_+i)}")
        for i in range(4): L.append(f"v_mul_f32 {v(GU+i)}, {v(g(i))}, {v(u(i))}")
        for i in range(4): L.append(f"v_fma_f32 {v(P_+i)}, {v(P_+i)}, {v(S2V)}, {v(S2V)}")
        for i in range(4): L.append(f"v_rcp_f32 {v(P_+i)}, {v(P_+i)}")
        for i in range(4): L.append(f"v_mul_f32 {v(GU+i)}, {v(GU+i)}, {v(P_+i)}")
        L.append(f"v_cvt_pk_bf16_f32 {v(OUT+2*jh)}, {v(GU)}, {v(GU+1)}")
        L.append(f"v_cvt_pk_bf16_f32 {v(OUT+2*jh+1)}, {v(GU+2)}, {v(GU+3)}")
    L.append(f"buffer_store_dwordx4 {vr(OUT,4)}, {v(VH2)}, {sr(SRD_WS,4)}, {s(S_H2)} offen{SC}")
    L.append(f"s_add_u32 {s(S_H2)}, {s(S_H2)}, 512")
    return L

class LQ:
    def __init__(self, p, init): self.p = p; self.q = list(init)
    def rd(self, text, tag): self.p(text); self.q.append(tag)
    def need(self, tag):
        if tag in self.q:
            last = max(i for i, t in enumerate(self.q) if t == tag)
            n = len(self.q) - 1 - last
            self.p(f"s_waitcnt lgkmcnt({min(n,15)})")
            self.q = self.q[last+1:]

def wread(k, addr):
    return f"ds_read_b128 {ar(WR+4*(k%RING),4)}, {v(addr)} offset:{1024*k}"
def mfma(acc, k, first):
    c = '0' if first else vr(acc,16)
    b = vr(XF+4*k,4) if k < 40 else vr(EXB,4)
    return f"v_mfma_f32_32x32x16_bf16 {vr(acc,16)}, {ar(WR+4*(k%RING),4)}, {b}, {c}"

def slot_of(q): return (q % 3) * SLAB

def tail(p, lq, k, q, vm_ticket):
    if k == 37:
        if vm_ticket is None: p("s_waitcnt lgkmcnt(0)")
        else:
            n = p.vm - 1 - vm_ticket
            p(f"s_waitcnt vmcnt({min(n,63)}) lgkmcnt(0)")
        lq.q = []
        p("s_barrier")
    if k >= 37: lq.rd(wread(k-37, VN), f"n{k-37}")

def next_addr(p, q):
    p(f"v_mov_b32 {v(VA)}, {v(VN)}")
    p(f"v_add_u32 {v(VN)}, {slot_of(q+2)}, v6")

def gemm_pass(p, q, dma_tickets, wd_next):
    accn, acco = ACC[q & 1], ACC[(q-1) & 1]
    lq = LQ(p, [f"w{k}" for k in range(4)])
    p(f"s_cmp_lt_u32 {q+2}, {s(S_CNT)}" if False else f"s_cmp_gt_u32 {s(S_CNT)}, {q+2}")
    p(f"s_cselect_b32 {s(SRD_W+2)}, {hex(NB['ws'])}, 0")
    ep = epilogue_ops(acco)
    dm = dma_slab() if q + 2 <= 6 else []
    nep = len(ep); ei = 0
    my_dma = None
    for k in range(41):
        if k % 2 == 0: lq.need(f"w{min(k+1,40)}")
        p(mfma(accn, k, k == 0))
        if k + 4 <= 40: lq.rd(wread(k+4, VA), f"w{k+4}")
        if k % 2 == 0 and k//2 < len(dm):
            for x in dm[k//2]: p(x)
            my_dma = p.vt()
        if k % 2 == 1 and k < 22 and wd_next < NWDA and wd_next < 10*q:
            for x in wd_load(wd_next): p(x)
            wd_next += 1
        if k == 22 and dm: advance_slab(p)
        if 2 <= k <= 36:
            tgt = int(round(nep * (k-1) / 35.0))
            while ei < tgt:
                p(ep[ei]); ei += 1
        tail(p, lq, k, q, dma_tickets.get(q+1))
    assert ei == nep
    lq.q = [t.replace('n', 'w') for t in lq.q]
    next_addr(p, q)
    dma_tickets[q+2] = my_dma
    return wd_next

def main(p):
    p.c("---- GEMM1 main ----")
    p(f"s_mul_i32 s3, {s(S_T)}, 40960")
    p(f"s_add_u32 s3, s3, {WS_X1F}")
    xt = {}
    def xload(ks):
        p(f"buffer_load_dwordx4 {vr(XF+4*ks,4)}, v6, {sr(SRD_WS,4)}, s3 offen offset:{1024*(ks%4)}{SC}")
        xt[ks] = p.vt()
        if ks % 4 == 3 and ks < 39: p("s_add_u32 s3, s3, 4096")
    for ks in range(XDEPTH): xload(ks)
    p(f"v_mov_b32 {v(VA)}, v6")
    p(f"v_add_u32 {v(VN)}, {SLAB}, v6")
    lq = LQ(p, [])
    for k in range(4): lq.rd(wread(k, VA), f"w{k}")
    p("v_lshrrev_b32 v7, 5, v1")
    p("v_bfe_u32 v8, v1, 4, 1")
    p(f"v_mul_u32_u24 {v(VH2)}, {54*1024}, v8")
    p(f"v_lshl_add_u32 {v(VH2)}, v7, 8, {v(VH2)}")
    p("v_and_b32 v8, 15, v1")
    p(f"v_lshl_add_u32 {v(VH2)}, v8, 4, {v(VH2)}")
    p(f"s_mul_i32 {s(S_H2)}, {s(S_T)}, {2*54*1024}")
    p(f"s_lshl_b32 {s(S_T0)}, {s(S_PB0)}, 9")
    p(f"s_add_u32 {s(S_H2)}, {s(S_H2)}, {s(S_T0)}")
    p(f"s_add_u32 {s(S_H2)}, {s(S_H2)}, {WS_H2F}")
    p(f"v_mov_b32 v{ONE}, 0x3f803f80")
    p(f"v_mov_b32 v{ONE+1}, 0x3f803f80")
    for k in range(4):
        p(f"v_accvgpr_write_b32 {a(ST1+k)}, 0")
        p(f"v_accvgpr_write_b32 {a(ST2+k)}, 0")
    for k in range(40):
        x = XF + 4*k
        p.wait_vm(xt[k])
        p(f"v_permlane16_swap_b32 {v(x)}, {v(x+2)}")
        p(f"v_permlane16_swap_b32 {v(x+1)}, {v(x+3)}")
        if k + XDEPTH < 40: xload(k + XDEPTH)
        if k % 2 == 0: lq.need(f"w{k+1}")
        p(f"v_mfma_f32_4x4x4_16b_bf16 {ar(ST1,4)}, {vr(ONE,2)}, {vr(x,2)}, {ar(ST1,4)}")
        p(f"v_mfma_f32_4x4x4_16b_bf16 {ar(ST2,4)}, {vr(x,2)}, {vr(x,2)}, {ar(ST2,4)}")
        p(mfma(ACC[0], k, k == 0))
        p(f"v_mfma_f32_4x4x4_16b_bf16 {ar(ST1,4)}, {vr(ONE,2)}, {vr(x+2,2)}, {ar(ST1,4)}")
        p(f"v_mfma_f32_4x4x4_16b_bf16 {ar(ST2,4)}, {vr(x+2,2)}, {vr(x+2,2)}, {ar(ST2,4)}")
        if k + 4 <= 40: lq.rd(wread(k+4, VA), f"w{k+4}")
        if k >= 37: tail(p, lq, k, 0, None)
    tick(p, 'g1_pass0')
    T = TT
    p(f"v_accvgpr_read_b32 {v(T)}, {a(ST1)}")
    for k in range(4): p(f"v_accvgpr_read_b32 {v(T+2+k)}, {a(ST2+k)}")
    p("v_and_b32 v7, 3, v1")
    p("v_cmp_eq_u32 vcc, 1, v7")
    p(f"v_cndmask_b32 {v(T+2)}, {v(T+2)}, {v(T+3)}, vcc")
    p("v_cmp_eq_u32 vcc, 2, v7")
    p(f"v_cndmask_b32 {v(T+2)}, {v(T+2)}, {v(T+4)}, vcc")
    p("v_cmp_eq_u32 vcc, 3, v7")
    p(f"v_cndmask_b32 {v(T+2)}, {v(T+2)}, {v(T+5)}, vcc")
    for r in (T, T+2):
        p(f"v_mov_b32 {v(T+6)}, {v(r)}")
        p(f"v_permlane32_swap_b32 {v(T+6)}, {v(r)}")
        p(f"v_add_f32 {v(r)}, {v(r)}, {v(T+6)}")
    p(f"v_mul_f32 {v(T)}, {fl(-1.0/640)}, {v(T)}")
    p(f"v_mul_f32 {v(T+2)}, {fl(1.0/640)}, {v(T+2)}")
    p(f"v_fma_f32 {v(T+2)}, -{v(T)}, {v(T)}, {v(T+2)}")
    p(f"v_max_f32 {v(T+2)}, 0, {v(T+2)}")
    p(f"v_add_f32 {v(S2V)}, {fl(1e-5)}, {v(T+2)}")
    p(f"v_rsq_f32 {v(T+1)}, {v(S2V)}")
    p(f"v_sqrt_f32 {v(T+3)}, {v(S2V)}")
    p(f"v_mul_f32 {v(K1)}, {fl(C1)}, {v(T+1)}")
    p(f"v_mul_f32 {v(T+4)}, {v(T+1)}, {v(T+1)}")
    p(f"v_mul_f32 {v(T+4)}, {v(T+4)}, {v(T+1)}")
    p(f"v_mul_f32 {v(K2)}, {fl(C2)}, {v(T+4)}")
    for hi, lo, src in ((T+5, T+6, T), (T+7, T+8, T+3)):
        p(f"v_cvt_pk_bf16_f32 {v(hi)}, {v(src)}, {v(src)}")
        p(f"v_lshlrev_b32 {v(hi)}, 16, {v(hi)}")
        p(f"v_sub_f32 {v(lo)}, {v(src)}, {v(hi)}")
    p(f"v_cvt_pk_bf16_f32 {v(EXB)}, {v(T+5)}, {v(T+6)}")
    p(f"v_cvt_pk_bf16_f32 {v(EXB+1)}, {v(T+5)}, {v(T+7)}")
    p(f"v_cvt_pk_bf16_f32 {v(EXB+2)}, {v(T+8)}, {v(T+7)}")
    p(f"v_mov_b32 {v(EXB+3)}, 0")
    lq.need("w40")
    p(mfma(ACC[0], 40, False))
    lq.rd(wread(3, VN), "n3")
    next_addr(p, 0)
    tick(p, 'g1_stats')
    tickets = {}
    wd_next = 0
    l_fin1 = p.newlabel('L_g1fin1'); l_fin = p.newlabel('L_g1fin')
    for q in range(1, 7):
        wd_next = gemm_pass(p, q, tickets, wd_next)
        if q == 5:
            p(f"s_cmp_eq_u32 {s(S_CNT)}, 6")
            p(f"s_cbranch_scc1 {l_fin1}")
            wd_at5 = wd_next
    wd_at6 = wd_next
    p(f"s_branch {l_fin}")
    p.label(l_fin1)
    for fi in range(wd_at5, wd_at6):
        for x in wd_load(fi): p(x)
    p("s_nop 7")
    for k in range(16): p(f"v_mov_b32 {v(ACC[0]+k)}, {v(ACC[1]+k)}")
    p.label(l_fin)
    tick(p, 'g1_passes')
    p("s_nop 11")
    for x in epilogue_ops(ACC[0]): p(x)
    tick(p, 'g1_final')
    return wd_at6
```

```python
from common import *
import phC
from phC import S_MT2, S_NT2, S_KS0, wd_reg, wd_load, NWDA
S_HB = 44
AC = 10; WV = 90; BR = 138; NRING = 5; X1R = 218; GB = 228; TT = 248

def prefetch(p, wd_next):
    p.c("---- GEMM2 prefetch ----")
    p("v_lshrrev_b32 v7, 4, v1")
    p("v_lshlrev_b32 v2, 4, v7")
    p(f"s_mul_i32 {s(S_T0)}, {s(S_NT2)}, 320")
    p(f"s_add_u32 {s(S_T0)}, {s(S_T0)}, {WS_MODP + 12800}")
    p(f"s_add_u32 {s(S_T1)}, {s(S_T0)}, 15360")
    TG = BR
    for j in range(5):
        p(f"buffer_load_dwordx4 {vr(GB+4*j,4)}, v2, {sr(SRD_WS,4)}, {s(S_T0)} offen offset:{64*j}{SC}")
        p(f"buffer_load_dwordx4 {vr(TG+4*j,4)}, v2, {sr(SRD_WS,4)}, {s(S_T1)} offen offset:{64*j}{SC}")
    tk = p.vt()
    p("v_and_b32 v8, 15, v1")
    p("v_lshlrev_b32 v3, 8, v7")
    p("v_lshl_add_u32 v3, v8, 4, v3")
    p(f"s_lshl_b32 {s(S_T0)}, {s(S_MT2)}, 1")
    p(f"s_lshr_b32 {s(S_T1)}, {s(S_WAVE)}, 1")
    p(f"s_add_u32 {s(S_T0)}, {s(S_T0)}, {s(S_T1)}")
    p(f"s_mul_i32 {s(S_T0)}, {s(S_T0)}, 40960")
    p(f"s_mul_i32 {s(S_T1)}, {s(S_NT2)}, {20*256}")
    p(f"s_add_u32 {s(S_T0)}, {s(S_T0)}, {s(S_T1)}")
    p(f"s_and_b32 {s(S_T1)}, {s(S_WAVE)}, 1")
    p(f"s_lshl_b32 {s(S_T1)}, {s(S_T1)}, 3")
    p(f"s_add_u32 {s(S_T0)}, {s(S_T0)}, {s(S_T1)}")
    p(f"s_add_u32 {s(S_T0)}, {s(S_T0)}, {WS_X1F}")
    for j in range(5):
        if j == 4: p(f"s_add_u32 {s(S_T0)}, {s(S_T0)}, 4096")
        p(f"buffer_load_dwordx2 {vr(X1R+2*j,2)}, v3, {sr(SRD_WS,4)}, {s(S_T0)} offen offset:{1024*(j%4)}{SC}")
    for fi in range(wd_next, 70):
        for x in wd_load(fi): p(x)
    p.wait_vm(tk)
    for r in range(20):
        p(f"v_add_f32 {v(GB+r)}, {v(GB+r)}, {v(TG+r)}"); rbf(p, GB+r)
    for r in range(4):
        p(f"s_add_u32 {s(S_T0)}, {s(S_WAVE)}, {r}")
        p(f"s_and_b32 {s(S_T0)}, {s(S_T0)}, 3")
        p(f"s_lshl_b32 {s(S_T1)}, {s(S_MT2)}, 2")
        p(f"s_add_u32 {s(S_T0)}, {s(S_T0)}, {s(S_T1)}")
        p(f"s_mul_i32 {s(S_T0)}, {s(S_T0)}, 54")
        p(f"s_add_u32 {s(S_T0)}, {s(S_T0)}, {s(S_KS0)}")
        p(f"s_lshl_b32 {s(S_T0)}, {s(S_T0)}, 10")
        p(f"s_add_u32 {s(S_HB+r)}, {s(S_T0)}, {WS_H2F}")
    mksrd(p, SRD_B, 'out')

def main(p):
    p.c("---- GEMM2 main ----")
    def acc(j, r): return AC + 4*(4*j + r)
    tk = {}
    def hload(ks):
        for r in range(4):
            p(f"buffer_load_dwordx4 {vr(BR+16*(ks%NRING)+4*r,4)}, v6, {sr(SRD_WS,4)}, {s(S_HB+r)} offen offset:{1024*(ks%4)}{SC}")
            if ks % 4 == 3: p(f"s_add_u32 {s(S_HB+r)}, {s(S_HB+r)}, 4096")
        tk[ks] = p.vt()
    for ks in range(NRING): hload(ks)
    lab_skip = p.newlabel('L_g2skip')
    for ks in range(14):
        if ks == 13:
            p(f"s_cmp_ge_u32 {s(S_WAVE)}, 2")
            p(f"s_cbranch_scc1 {lab_skip}")
        p.wait_vm(tk[ks])
        if ks == 0: tick(p, 'g2_first')
        for j in range(5):
            for r in range(4):
                d = vr(acc(j, r), 4)
                c = '0' if ks == 0 else d
                p(f"v_mfma_f32_16x16x32_bf16 {d}, {wd_reg(5*ks+j)}, {vr(BR+16*(ks%NRING)+4*r,4)}, {c}")
        if ks + NRING < 14: hload(ks + NRING)
    p.label(lab_skip)
    tick(p, 'g2_main')
    for r in range(1, 4):
        p(f"s_add_u32 {s(S_T0)}, {s(S_WAVE)}, {r}")
        p(f"s_and_b32 {s(S_T0)}, {s(S_T0)}, 3")
        p(f"s_lshl_b32 {s(S_T0)}, {s(S_T0)}, 2")
        p(f"s_add_u32 {s(S_T0)}, {s(S_T0)}, {s(S_WAVE)}")
        p(f"s_mul_i32 {s(S_T0)}, {s(S_T0)}, 5120")
        p(f"v_add_u32 {v(1+r)}, {s(S_T0)}, v6")
    p("s_nop 4")
    for r in range(1, 4):
        for j in range(5):
            p(f"ds_write_b128 {v(1+r)}, {vr(acc(j, r),4)} offset:{j*1024}")
    for r in range(1, 4):
        p(f"s_add_u32 {s(S_T0)}, {s(S_WAVE)}, {r}")
        p(f"s_and_b32 {s(S_T0)}, {s(S_T0)}, 3")
        p(f"s_lshl_b32 {s(S_T1)}, {s(S_WAVE)}, 2")
        p(f"s_add_u32 {s(S_T0)}, {s(S_T0)}, {s(S_T1)}")
        p(f"s_mul_i32 {s(S_T0)}, {s(S_T0)}, 5120")
        p(f"v_add_u32 {v(TT+r)}, {s(S_T0)}, v6")
    p("v_lshrrev_b32 v7, 4, v1")
    p("v_and_b32 v8, 15, v1")
    p("v_mul_u32_u24 v5, 1280, v8")
    p("v_lshl_add_u32 v5, v7, 3, v5")
    p(f"s_lshl_b32 {s(S_T0)}, {s(S_MT2)}, 2")
    p(f"s_add_u32 {s(S_T0)}, {s(S_T0)}, {s(S_WAVE)}")
    p(f"s_mul_i32 {s(S_T0)}, {s(S_T0)}, {16*1280}")
    p(f"s_mul_i32 {s(S_T1)}, {s(S_NT2)}, 160")
    p(f"s_add_u32 {s(S_T0)}, {s(S_T0)}, {s(S_T1)}")
    p("s_waitcnt vmcnt(0) lgkmcnt(0)")
    p("s_barrier")
    tick(p, 'g2_red')
    RD = 90
    for j in range(5):
        for r in range(1, 4):
            p(f"ds_read_b128 {vr(RD+12*j+4*(r-1),4)}, {v(TT+r)} offset:{j*1024}")
    F = 160
    for j in range(5):
        p(f"s_waitcnt lgkmcnt({min(15, 3*(4-j))})")
        r = RD + 12*j; o = acc(j, 0)
        for i in range(0, 4, 2):
            p(f"v_pk_add_f32 {vr(r+i,2)}, {vr(r+i,2)}, {vr(r+4+i,2)}")
            p(f"v_pk_add_f32 {vr(o+i,2)}, {vr(o+i,2)}, {vr(r+8+i,2)}")
        for i in range(0, 4, 2): p(f"v_pk_add_f32 {vr(o+i,2)}, {vr(o+i,2)}, {vr(r+i,2)}")
        unpack(p, F, F+1, X1R+2*j); unpack(p, F+2, F+3, X1R+2*j+1)
        for i in range(0, 4, 2): p(f"v_pk_fma_f32 {vr(F+i,2)}, {vr(GB+4*j+i,2)}, {vr(o+i,2)}, {vr(F+i,2)}")
        p(f"v_cvt_pk_bf16_f32 {v(r)}, {v(F)}, {v(F+1)}")
        p(f"v_cvt_pk_bf16_f32 {v(r+1)}, {v(F+2)}, {v(F+3)}")
        p(f"buffer_store_dwordx2 {vr(r,2)}, v5, {sr(SRD_B,4)}, {s(S_T0)} offen offset:{32*j}")
    tick(p, 'g2_ep')
```

```python
from common import *
KC_STRIDE = 4160
KC_BYTES = 4*KC_STRIDE
U_OFF = KC_BYTES
U_PAD = 480
U_BYTES = U_PAD + 4096
WSTRIDE = KC_BYTES + U_BYTES
S_G = 40; S_D = 41; S_LB = 42
IN = 100; DT = 108

def conv_ids(p):
    p(f"s_and_b32 {s(S_G)}, s2, 7")
    p(f"s_mul_i32 {s(S_G)}, {s(S_G)}, 20")
    p(f"s_lshr_b32 {s(S_T0)}, s2, 3")
    p(f"s_add_u32 {s(S_G)}, {s(S_G)}, {s(S_T0)}")
    p(f"s_lshl_b32 {s(S_D)}, {s(S_G)}, 2")
    p(f"s_add_u32 {s(S_D)}, {s(S_D)}, {s(S_WAVE)}")
    p(f"s_mul_i32 {s(S_LB)}, {s(S_WAVE)}, {WSTRIDE}")

def cmul(dst, x, y, t):
    return [f"v_pk_mul_f32 {vr(t,2)}, {vr(x,2)}, {vr(y,2)} op_sel:[0,0] op_sel_hi:[0,1]",
            f"v_pk_fma_f32 {vr(dst,2)}, {vr(x,2)}, {vr(y,2)}, {vr(t,2)} op_sel:[1,1,0] op_sel_hi:[1,0,1] neg_lo:[1,0,0]"]

NKLOADS = 9
def kgen_loads(p):
    p.c("---- Kgen loads ----")
    conv_ids(p)
    mksrd(p, SRD_B, 'logdt')
    p(f"s_lshl_b32 {s(S_T0)}, {s(S_D)}, 8")
    p(f"s_lshl_b32 {s(S_T1)}, {s(S_D)}, 1")
    p("v_lshlrev_b32 v8, 1, v1")
    p("v_mov_b32 v9, 0")
    p(f"buffer_load_ushort {v(DT)}, v9, {sr(SRD_B,4)}, {s(S_T1)} offen")
    for k, nm in enumerate(['logA', 'Aim', 'Cre', 'Cim']):
        mksrd(p, SRD_C, nm)
        for ps in range(2):
            p(f"buffer_load_ushort {v(IN+4*ps+k)}, v8, {sr(SRD_C,4)}, {s(S_T0)} offen offset:{128*ps}")

def kgen(p, mid=None):
    p.c("---- Kgen ----")
    AW = 20; AR = 36; ACC = 40
    p("v_lshrrev_b32 v4, 2, v1")
    p("v_and_b32 v5, 3, v1")
    p("v_lshlrev_b32 v5, 2, v5")
    p(f"v_add_u32 v5, {s(S_LB)}, v5")
    for x in range(16):
        p(f"v_xor_b32 v6, {x}, v4")
        p(f"v_lshl_add_u32 {v(AW+x)}, v6, 4, v5")
    p("v_and_b32 v4, 15, v1")
    p("v_lshrrev_b32 v5, 4, v1")
    p("v_lshlrev_b32 v7, 8, v4")
    p(f"v_add_u32 v7, {s(S_LB)}, v7")
    for q in range(4):
        p(f"v_add_u32 v6, {4*q}, v5")
        p("v_xor_b32 v6, v6, v4")
        p(f"v_lshl_add_u32 {v(AR+q)}, v6, 4, v7")
    for k in range(12): p(f"v_mov_b32 {v(ACC+k)}, 0")
    p(f"v_lshlrev_b32 {v(DT)}, 16, {v(DT)}")
    p(f"v_mul_f32 {v(DT)}, {fl(LOG2E)}, {v(DT)}")
    p(f"v_exp_f32 {v(DT)}, {v(DT)}")
    rbf(p, DT)
    for k in range(8): p(f"v_lshlrev_b32 {v(IN+k)}, 16, {v(IN+k)}")
    SCNT = 43
    p(f"s_mov_b32 {s(SCNT)}, 0")
    Z = 52
    def z(b): return Z + 2*(b-1)
    Z8 = 66; E1 = 68; EC = 70; EN = 72; VC = 74; VN = 76; T1 = 78; T2 = 80; T3 = 82; PR = 84
    AL = 86; PK = 88; PR2 = 92; T4 = 94
    FR = 112
    lab = p.newlabel('L_kpass')
    p.loop_begin(lab)
    p(f"v_mul_f32 {v(T1)}, {fl(LOG2E)}, {v(IN)}")
    p(f"v_exp_f32 {v(T1)}, {v(T1)}")
    rbf(p, T1)
    p(f"v_mul_f32 {v(T1)}, {v(T1)}, {v(DT)}")
    p(f"v_mul_f32 {v(AL)}, {fl(-LOG2E)}, {v(T1)}")
    p(f"v_mul_f32 {v(T1)}, {v(IN+1)}, {v(DT)}")
    p(f"v_mul_f32 {v(AL+1)}, {fl(1.0/(2*math.pi))}, {v(T1)}")
    p(f"v_mul_f32 {v(VC)}, {v(IN+2)}, {v(DT)}")
    p(f"v_mul_f32 {v(VC+1)}, {v(IN+3)}, {v(DT)}")
    p(f"v_add_f32 {v(VC)}, {v(VC)}, {v(VC)}")
    p(f"v_add_f32 {v(VC+1)}, {v(VC+1)}, {v(VC+1)}")
    bases = [(z(1), 1.0, T1), (Z8, 8.0, T2), (E1, 128.0, T3)]
    for dst, pw, t in bases: p(f"v_mul_f32 {v(t)}, {fl(pw)}, {v(AL)}")
    for dst, pw, t in bases: p(f"v_mul_f32 {v(t+1)}, {fl(pw)}, {v(AL+1)}")
    for dst, pw, t in bases: p(f"v_exp_f32 {v(t)}, {v(t)}")
    for dst, pw, t in bases: p(f"v_fract_f32 {v(t+1)}, {v(t+1)}")
    for dst, pw, t in bases: p(f"v_cos_f32 {v(dst)}, {v(t+1)}")
    for dst, pw, t in bases: p(f"v_sin_f32 {v(dst+1)}, {v(t+1)}")
    for dst, pw, t in bases: p(f"v_pk_mul_f32 {vr(dst,2)}, {vr(dst,2)}, {vr(t,2)} op_sel_hi:[1,0]")
    pkc = [0, 0]
    def wr(e, r, neg):
        pool = 1 if neg else 0
        t = PK + 2*pool + (pkc[pool] & 1); pkc[pool] += 1
        sign = '-' if neg else ''
        return [f"v_cvt_pk_bf16_f32 {v(t)}, {v(r)}, {sign}{v(r+1)}",
                f"ds_write_b32 {v(AW + (e & 15))}, {v(t)} offset:{256*e}"]
    B = []
    cur, nxt = VC, VN
    for j in range(16):
        B += wr(j, cur, False)
        if j < 15:
            B += cmul(nxt, cur, Z8, T3); cur, nxt = nxt, cur
    Wl = []
    Wl += cmul(z(2), z(1), z(1), T1)
    Wl += cmul(EC, E1, E1, T4)
    Wl += cmul(z(3), z(2), z(1), T2)
    Wl += cmul(z(4), z(2), z(2), T1)
    Wl += wr(16+1, z(1), True)
    Wl += cmul(z(5), z(4), z(1), T2)
    Wl += wr(16+2, z(2), True)
    Wl += cmul(z(6), z(3), z(3), T1)
    Wl += wr(16+3, z(3), True)
    Wl += cmul(z(7), z(4), z(3), T2)
    Wl += [f"v_mov_b32 {v(PK+3)}, 0x3f80", f"ds_write_b32 {v(AW+0)}, {v(PK+3)} offset:{256*16}"]
    for b in range(4, 8): Wl += wr(16+b, z(b), True)
    Wl += wr(16+8, E1, True)
    prs = [PR, PR2]; ts = [T1, T2]; pc = 0
    for b in range(1, 8):
        Wl += cmul(prs[pc & 1], E1, z(b), ts[pc & 1]); Wl += wr(16+8+b, prs[pc & 1], True); pc += 1
    ecur, enxt = EC, EN
    for al in range(2, 17):
        nxt_ops = cmul(enxt, ecur, E1, T4) if al < 16 else []
        Wl += nxt_ops
        if al in (2, 3):
            base = 32 + 4*(al-2)
            Wl += wr(base, ecur, True)
            for k, b in enumerate((2, 4, 6)):
                Wl += cmul(prs[pc & 1], ecur, z(b), ts[pc & 1]); Wl += wr(base+1+k, prs[pc & 1], True); pc += 1
        elif al in (4, 5, 6, 7):
            base = 32 + 8 + 2*(al-4)
            Wl += wr(base, ecur, True)
            Wl += cmul(prs[pc & 1], ecur, z(4), ts[pc & 1]); Wl += wr(base+1, prs[pc & 1], True); pc += 1
        else:
            Wl += wr(48 + (al-8), ecur, True)
        ecur, enxt = enxt, ecur
    for x in interleave(Wl, B): p(x)
    for q in range(4):
        for tb in range(4):
            p(f"ds_read_b128 {vr(FR+16*q+4*tb,4)}, {v(AR+q)} offset:{4096*tb}")
    for q in range(4):
        p(f"s_waitcnt lgkmcnt({12-4*q})")
        for t in range(3):
            p(f"v_mfma_f32_16x16x32_bf16 {vr(ACC+4*t,4)}, {vr(FR+16*q+4*(t+1),4)}, {vr(FR+16*q,4)}, {vr(ACC+4*t,4)}")
    for k in range(4): p(f"v_mov_b32 {v(IN+k)}, {v(IN+4+k)}")
    if mid is not None:
        lm = p.newlabel('L_kmid')
        p(f"s_cmp_eq_u32 {s(SCNT)}, 0")
        p(f"s_cbranch_scc0 {lm}")
        mid(p)
        p.label(lm)
    p(f"s_add_u32 {s(SCNT)}, {s(SCNT)}, 1")
    p(f"s_cmp_lt_u32 {s(SCNT)}, 2")
    p(f"s_cbranch_scc1 {lab}")
    p.loop_end()
    tick(p, 'kgen_passes')
    p("v_and_b32 v4, 15, v1")
    p("v_lshrrev_b32 v5, 4, v1")
    p(f"s_add_u32 {s(S_T0)}, {s(S_LB)}, {U_OFF}")
    p("v_and_b32 v6, 1, v5")
    p("v_lshrrev_b32 v7, 1, v5")
    p("v_lshlrev_b32 v8, 4, v4")
    p("v_lshl_add_u32 v8, v6, 3, v8")
    p("v_lshl_add_u32 v8, v7, 8, v8")
    p(f"v_add_u32 v8, {s(S_T0)}, v8")
    p("v_lshlrev_b32 v9, 2, v4")
    p("v_lshlrev_b32 v2, 1, v4")
    p("v_cmp_gt_u32 vcc, 2, v5")
    p("v_cndmask_b32 v9, v2, v9, vcc")
    p("v_lshl_add_u32 v9, v5, 6, v9")
    p("v_add_u32 v9, 256, v9")
    p("v_mov_b32 v2, 32")
    p("v_mov_b32 v3, 2")
    p("v_cndmask_b32 v2, v2, v3, vcc")
    p("v_add_u32 v2, v2, v9")
    p("v_lshlrev_b32 v9, 1, v9")
    p("v_lshlrev_b32 v2, 1, v2")
    p(f"v_add_u32 v9, {s(S_T0)}, v9")
    p(f"v_add_u32 v2, {s(S_T0)}, v2")
    p("v_lshl_add_u32 v3, v5, 6, v4")
    p("v_lshlrev_b32 v3, 1, v3")
    p(f"s_add_u32 {s(S_T1)}, {s(S_T0)}, 1024")
    p(f"v_add_u32 v3, {s(S_T1)}, v3")
    O = 60
    p(f"v_cvt_pk_bf16_f32 {v(O)}, {v(ACC)}, {v(ACC+1)}")
    p(f"v_cvt_pk_bf16_f32 {v(O+1)}, {v(ACC+2)}, {v(ACC+3)}")
    p(f"ds_write_b64 v8, {vr(O,2)}")
    p(f"v_cvt_pk_bf16_f32 {v(O+2)}, {v(ACC+4)}, {v(ACC+5)}")
    p(f"v_cvt_pk_bf16_f32 {v(O+3)}, {v(ACC+6)}, {v(ACC+7)}")
    p(f"ds_write_b32 v9, {v(O+2)}")
    p(f"ds_write_b32 v2, {v(O+3)}")
    for i in range(4):
        p(f"v_cvt_pk_bf16_f32 {v(O+4+i)}, {v(ACC+8+i)}, {v(ACC+8+i)}")
        p(f"ds_write_b16 v3, {v(O+4+i)} offset:{32*i}")
    for k in range(4): p(f"v_mov_b32 {v(O+k)}, 0")
    p("v_lshrrev_b32 v4, 1, v1")
    p(f"v_mul_u32_u24 v4, {KC_STRIDE}, v4")
    p("v_and_b32 v5, 1, v1")
    p("v_lshl_add_u32 v4, v5, 4, v4")
    p(f"v_add_u32 v4, {s(S_LB)}, v4")
    p(f"s_mov_b64 {sr(S_EX,2)}, exec")
    p("s_mov_b64 exec, 0xff")
    p(f"ds_write_b128 v4, {vr(O,4)}")
    p(f"s_mov_b64 exec, {sr(S_EX,2)}")
    p("v_lshlrev_b32 v8, 4, v1")
    p(f"s_add_u32 {s(S_T1)}, {s(S_LB)}, 32")
    p(f"v_add_u32 v8, {s(S_T1)}, v8")
    Dd = 64
    p("v_lshlrev_b32 v4, 4, v1")
    p("v_lshlrev_b32 v5, 3, v1")
    p("v_add_u32 v5, 256, v5")
    p("v_cmp_gt_u32 vcc, 32, v1")
    p("v_cndmask_b32 v4, v5, v4, vcc")
    p(f"v_add_u32 v4, {s(S_T0)}, v4")
    p(f"ds_read_b64 {vr(Dd,2)}, v4")
    p(f"ds_read_b64 {vr(Dd+2,2)}, v4 offset:8")
    p("v_lshlrev_b32 v4, 2, v1")
    p(f"s_add_u32 {s(S_T1)}, {s(S_T0)}, 768")
    p(f"v_add_u32 v4, {s(S_T1)}, v4")
    p(f"ds_read2_b32 {vr(Dd+4,2)}, v4 offset0:0 offset1:1")
    p("v_lshrrev_b32 v4, 1, v1")
    p("v_lshlrev_b32 v4, 2, v4")
    p(f"s_add_u32 {s(S_T1)}, {s(S_T0)}, 1024")
    p(f"v_add_u32 v4, {s(S_T1)}, v4")
    p(f"ds_read2_b32 {vr(Dd+6,2)}, v4 offset0:0 offset1:1")
    p(f"ds_read2_b32 {vr(Dd+8,2)}, v4 offset0:32 offset1:33")
    Oo = 76; C1 = 80; C2 = 84; C3 = 88; P2 = 92; SEL = 93
    SC2, SC3 = 44, 45
    p(f"s_mov_b32 {s(SC2)}, 0"); p(f"s_mov_b32 {s(SC3)}, 0")
    LL, HH, HL, ID, S0ID, S0LL = 0x01000100, 0x03020302, 0x05040302, 0x03020100, 0x07060504, 0x05040504
    def copies(it):
        p(f"v_mov_b32 {v(C2)}, {s(SC3)}")
        p(f"v_mov_b32 {v(P2)}, {s(SC2)}")
        p(f"ds_write_b128 v8, {vr(Oo,4)} offset:{1024*it}")
        p(f"v_mov_b32_dpp {v(C2)}, {v(Oo+3)} wave_shr:1 row_mask:0xf bank_mask:0xf")
        p(f"v_mov_b32_dpp {v(P2)}, {v(Oo+2)} wave_shr:1 row_mask:0xf bank_mask:0xf")
        if it < 3:
            p(f"v_readlane_b32 {s(SC3)}, {v(Oo+3)}, 63")
            p(f"v_readlane_b32 {s(SC2)}, {v(Oo+2)}, 63")
        p(f"v_alignbit_b32 {v(C1+1)}, {v(Oo+1)}, {v(Oo)}, 16")
        p(f"v_alignbit_b32 {v(C1+2)}, {v(Oo+2)}, {v(Oo+1)}, 16")
        p(f"v_alignbit_b32 {v(C1+3)}, {v(Oo+3)}, {v(Oo+2)}, 16")
        for k in range(3): p(f"v_mov_b32 {v(C2+1+k)}, {v(Oo+k)}")
        p(f"v_alignbit_b32 {v(C1)}, {v(Oo)}, {v(C2)}, 16")
        p(f"v_alignbit_b32 {v(C3)}, {v(C2)}, {v(P2)}, 16")
        p(f"ds_write_b128 v8, {vr(C2,4)} offset:{1024*it + 2*KC_STRIDE}")
        for k in range(3): p(f"v_mov_b32 {v(C3+1+k)}, {v(C1+k)}")
        p(f"ds_write_b128 v8, {vr(C1,4)} offset:{1024*it + KC_STRIDE}")
        p(f"ds_write_b128 v8, {vr(C3,4)} offset:{1024*it + 3*KC_STRIDE}")
    def selv(r, lo, hi):
        p(f"v_mov_b32 {v(r)}, {hex(hi)}")
        p(f"v_mov_b32 v5, {hex(lo)}")
        p(f"v_cndmask_b32 {v(r)}, {v(r)}, v5, vcc")
    selv(SEL, ID, LL); selv(SEL+1, S0ID, HL); selv(SEL+2, S0ID, LL)
    p(f"s_mov_b32 {s(S_T2)}, {hex(HL)}")
    p("s_waitcnt lgkmcnt(0)")
    p(f"v_perm_b32 {v(Oo)}, {v(Dd)}, {v(Dd)}, {v(SEL)}")
    p(f"v_perm_b32 {v(Oo+1)}, {v(Dd+1)}, {v(Dd)}, {v(SEL+1)}")
    p(f"v_perm_b32 {v(Oo+2)}, {v(Dd+2)}, {v(Dd+1)}, {v(SEL+2)}")
    p(f"v_perm_b32 {v(Oo+3)}, {v(Dd+2)}, {v(Dd+1)}, {s(S_T2)}")
    p(f"v_cndmask_b32 {v(Oo+3)}, {v(Oo+3)}, {v(Dd+3)}, vcc")
    copies(0)
    p(f"s_mov_b32 {s(S_T1)}, {hex(LL)}")
    p(f"s_mov_b32 {s(S_T2)}, {hex(HH)}")
    d = Dd + 4
    p(f"v_perm_b32 {v(Oo)}, {v(d)}, {v(d)}, {s(S_T1)}")
    p(f"v_mov_b32 {v(Oo+1)}, {v(d)}")
    p(f"v_perm_b32 {v(Oo+2)}, {v(d)}, {v(d)}, {s(S_T2)}")
    p(f"v_perm_b32 {v(Oo+3)}, {v(d+1)}, {v(d+1)}, {s(S_T1)}")
    copies(1)
    p("v_and_b32 v5, 1, v1")
    p("v_cmp_eq_u32 vcc, 0, v5")
    selv(SEL, LL, HH); selv(SEL+1, ID, S0LL); selv(SEL+2, HH, S0LL)
    for it in (2, 3):
        d = Dd + 6 + 2*(it-2)
        p(f"v_perm_b32 {v(Oo)}, {v(d)}, {v(d)}, {v(SEL)}")
        p(f"v_mov_b32 {v(Oo+1)}, {v(Oo)}")
        p(f"v_perm_b32 {v(Oo+2)}, {v(d+1)}, {v(d)}, {v(SEL+1)}")
        p(f"v_perm_b32 {v(Oo+3)}, {v(d+1)}, {v(d)}, {v(SEL+2)}")
        copies(it)
    tick(p, 'kgen_done')
```

```python
from common import *
S_M, S_CG = 44, 45
WT_BASE = 8192
def wprep_dma(p):
    p.c("---- W' prep: DMA ----")
    p(f"s_sub_u32 {s(S_CG)}, s2, 160")
    p(f"s_and_b32 {s(S_M)}, {s(S_CG)}, 1")
    p(f"s_lshr_b32 {s(S_CG)}, {s(S_CG)}, 1")
    p(f"s_cmp_eq_u32 {s(S_M)}, 0")
    p(f"s_cselect_b32 {s(SRD_A)}, {s(ptr('Wg'))}, {s(ptr('Wu'))}")
    p(f"s_cselect_b32 {s(SRD_A+1)}, {s(ptr('Wg')+1)}, {s(ptr('Wu')+1)}")
    p(f"s_mov_b32 {s(SRD_A+2)}, {hex(NB['Wg'])}")
    p(f"s_mov_b32 {s(SRD_A+3)}, 0x00020000")
    p("v_lshrrev_b32 v2, 3, v1")
    p("v_mul_u32_u24 v2, 3456, v2")
    p("v_bfe_u32 v3, v1, 4, 1")
    p("v_lshlrev_b32 v3, 2, v3")
    p("v_and_b32 v4, 7, v1")
    p("v_xor_b32 v3, v3, v4")
    p("v_lshl_add_u32 v2, v3, 4, v2")
    p(f"s_mul_i32 {s(S_T0)}, {s(S_WAVE)}, {20*8*3456}")
    p(f"s_lshl_b32 {s(S_T1)}, {s(S_CG)}, 7")
    p(f"s_add_u32 {s(S_T0)}, {s(S_T0)}, {s(S_T1)}")
    p(f"s_mul_i32 {s(S_T1)}, {s(S_WAVE)}, {20*1024}")
    p(f"s_add_u32 {s(S_T1)}, {s(S_T1)}, {WT_BASE}")
    for i in range(20):
        p(f"s_add_u32 m0, {s(S_T1)}, {1024*i}")
        p(f"buffer_load_dwordx4 v2, {sr(SRD_A,4)}, {s(S_T0)} offen lds")
        if i < 19: p(f"s_add_u32 {s(S_T0)}, {s(S_T0)}, {8*3456}")

def wprep(p):
    p.c("---- W' prep ----")
    TC, TS, RED = 1024, 1024+2560, 1024+5120
    A0, A1 = 10, 16
    p("v_lshlrev_b32 v5, 2, v0")
    for k in range(3):
        for kh in range(2):
            p(f"s_mov_b32 {s(S_T0)}, {WS_MODP + kh*15360 + 3*2560 + 1024*k}")
            p(f"buffer_load_dword {v(A0+2*k+kh)}, v5, {sr(SRD_WS,4)}, {s(S_T0)} offen{SC}")
            p(f"buffer_load_dword {v(A1+2*k+kh)}, v5, {sr(SRD_WS,4)}, {s(S_T0)} offen offset:2560{SC}")
    p("s_waitcnt vmcnt(0)")
    for k in range(3):
        p(f"v_add_f32 {v(A0+2*k)}, {v(A0+2*k)}, {v(A0+2*k+1)}"); rbf(p, A0+2*k)
        p(f"v_add_f32 {v(A1+2*k)}, {v(A1+2*k)}, {v(A1+2*k+1)}"); rbf(p, A1+2*k)
        p(f"v_add_f32 {v(A1+2*k)}, 1.0, {v(A1+2*k)}"); rbf(p, A1+2*k)
    for k in range(3):
        if k == 2:
            p(f"s_mov_b64 {sr(S_EX,2)}, exec")
            p("v_cmp_gt_u32 vcc, 128, v0")
            p("s_and_b64 exec, exec, vcc")
            lab = p.newlabel('L_wp_skip')
            p(f"s_cbranch_execz {lab}")
        p(f"ds_write_b32 v5, {v(A0+2*k)} offset:{TS+1024*k}")
        p(f"ds_write_b32 v5, {v(A1+2*k)} offset:{TC+1024*k}")
        if k == 2:
            p.label(lab)
            p(f"s_mov_b64 exec, {sr(S_EX,2)}")
    p("v_bfe_u32 v2, v1, 2, 2")
    p("v_lshrrev_b32 v3, 4, v1")
    p("v_and_b32 v4, 3, v1")
    p("v_lshlrev_b32 v6, 5, v3")
    p("v_lshl_add_u32 v6, v4, 3, v6")
    p("v_lshrrev_b32 v7, 1, v2")
    p("v_lshlrev_b32 v7, 6, v7")
    p("v_xor_b32 v6, v6, v7")
    p("v_lshl_add_u32 v6, v2, 7, v6")
    p(f"s_lshl_b32 {s(S_T0)}, {s(S_WAVE)}, 10")
    p(f"s_add_u32 {s(S_T0)}, {s(S_T0)}, {WT_BASE}")
    p(f"v_add_u32 v6, {s(S_T0)}, v6")
    p(f"s_lshl_b32 {s(S_T0)}, {s(S_WAVE)}, 5")
    p(f"v_mov_b32 v7, {s(S_T0)}")
    p(f"v_mul_u32_u24 v8, {SLAB}, v3")
    p("v_and_b32 v9, 15, v1")
    p("v_lshl_add_u32 v8, v9, 4, v8")
    SST = 50
    p(f"s_mul_i32 {s(SST)}, {s(S_CG)}, {4*SLAB}")
    p(f"s_lshl_b32 {s(S_T0)}, {s(S_M)}, 8")
    p(f"s_add_u32 {s(SST)}, {s(SST)}, {s(S_T0)}")
    p(f"s_add_u32 {s(SST)}, {s(SST)}, {WS_WPF}")
    p(f"s_add_u32 s52, {s(SST)}, {40*1024}")
    p(f"s_lshl_b32 {s(S_T0)}, {s(S_WAVE)}, 9")
    p(f"s_add_u32 {s(SST)}, {s(SST)}, {s(S_T0)}")
    CW, SW = 30, 32
    for r in (CW, CW+1, SW, SW+1): p(f"v_mov_b32 {v(r)}, 0")
    p("s_waitcnt lgkmcnt(0)")
    p("s_barrier")
    W = 36; Cc = 40; Sb = 48; F = 56; P = 64; O = 72
    SCNT = 51
    p(f"s_mov_b32 {s(SCNT)}, 0")
    lab = p.newlabel('L_wp')
    p.loop_begin(lab)
    p(f"ds_read_b64_tr_b16 {vr(W,2)}, v6")
    p(f"ds_read_b64_tr_b16 {vr(W+2,2)}, v6 offset:512")
    p(f"ds_read_b128 {vr(Cc,4)}, v7 offset:{TC}")
    p(f"ds_read_b128 {vr(Cc+4,4)}, v7 offset:{TC+16}")
    p(f"ds_read_b128 {vr(Sb,4)}, v7 offset:{TS}")
    p(f"ds_read_b128 {vr(Sb+4,4)}, v7 offset:{TS+16}")
    p("v_add_u32 v6, 4096, v6")
    p("v_add_u32 v7, 128, v7")
    p("s_waitcnt lgkmcnt(4)")
    for k in range(4): unpack(p, F+2*k, F+2*k+1, W+k)
    p("s_waitcnt lgkmcnt(0)")
    for k in range(4):
        p(f"v_pk_mul_f32 {vr(P+2*k,2)}, {vr(F+2*k,2)}, {vr(Cc+2*k,2)}")
        p(f"v_pk_fma_f32 {vr(SW,2)}, {vr(F+2*k,2)}, {vr(Sb+2*k,2)}, {vr(SW,2)}")
    for k in range(4):
        p(f"v_cvt_pk_bf16_f32 {v(O+k)}, {v(P+2*k)}, {v(P+2*k+1)}")
        p(f"v_pk_add_f32 {vr(CW,2)}, {vr(CW,2)}, {vr(P+2*k,2)}")
    p(f"buffer_store_dwordx4 {vr(O,4)}, v8, {sr(SRD_WS,4)}, {s(SST)} offen{SC}")
    p(f"s_add_u32 {s(SST)}, {s(SST)}, 2048")
    p(f"s_add_u32 {s(SCNT)}, {s(SCNT)}, 1")
    p(f"s_cmp_lt_u32 {s(SCNT)}, 20")
    p(f"s_cbranch_scc1 {lab}")
    p.loop_end()
    p(f"v_add_f32 {v(CW)}, {v(CW)}, {v(CW+1)}")
    p(f"v_add_f32 {v(SW)}, {v(SW)}, {v(SW+1)}")
    p("v_lshlrev_b32 v5, 2, v0")
    p(f"ds_write_b32 v5, {v(CW)} offset:{RED}")
    p(f"ds_write_b32 v5, {v(SW)} offset:{RED+1024}")
    p("s_waitcnt lgkmcnt(0)")
    p("s_barrier")
    lab = wave0_begin(p)
    p("v_lshlrev_b32 v5, 2, v1")
    for w in range(4):
        p(f"ds_read_b32 {v(F+w)}, v5 offset:{RED+256*w}")
        p(f"ds_read_b32 {v(F+4+w)}, v5 offset:{RED+1024+256*w}")
    p("s_waitcnt lgkmcnt(0)")
    for b in (F, F+4):
        p(f"v_add_f32 {v(b)}, {v(b)}, {v(b+1)}")
        p(f"v_add_f32 {v(b+2)}, {v(b+2)}, {v(b+3)}")
        p(f"v_add_f32 {v(b)}, {v(b)}, {v(b+2)}")
    c, sw = F, F+4
    CH, CL, SH, SL = P, P+1, P+2, P+3
    for hi, lo, src in ((CH, CL, c), (SH, SL, sw)):
        p(f"v_cvt_pk_bf16_f32 {v(hi)}, {v(src)}, {v(src)}")
        p(f"v_lshlrev_b32 {v(hi)}, 16, {v(hi)}")
        p(f"v_sub_f32 {v(lo)}, {v(src)}, {v(hi)}")
    p(f"v_cvt_pk_bf16_f32 {v(O)}, {v(CH)}, {v(CH)}")
    p(f"v_cvt_pk_bf16_f32 {v(O+1)}, {v(CL)}, {v(SH)}")
    p(f"v_cvt_pk_bf16_f32 {v(O+2)}, {v(SH)}, {v(SL)}")
    p(f"v_mov_b32 {v(O+3)}, 0")
    p(f"buffer_store_dwordx4 {vr(O,4)}, v8, {sr(SRD_WS,4)}, s52 offen{SC}")
    for k in range(4): p(f"v_mov_b32 {v(O+4+k)}, 0")
    p(f"buffer_store_dwordx4 {vr(O+4,4)}, v8, {sr(SRD_WS,4)}, s52 offen offset:512{SC}")
    p.label(lab)

def wdprep(p):
    p.c("---- W_down prep ----")
    mksrd(p, SRD_A, 'Wd')
    S_KS = 46
    p(f"s_sub_u32 {s(S_CG)}, s2, 214")
    p(f"s_and_b32 {s(S_M)}, {s(S_CG)}, 3")
    p(f"s_lshr_b32 {s(S_CG)}, {s(S_CG)}, 2")
    p(f"s_mul_i32 {s(S_KS)}, {s(S_M)}, 14")
    p(f"s_cmp_eq_u32 {s(S_M)}, 3")
    p(f"s_cselect_b32 {s(S_T0)}, 1, 0")
    p(f"s_sub_u32 {s(S_KS)}, {s(S_KS)}, {s(S_T0)}")
    p("v_lshrrev_b32 v2, 3, v1")
    p("v_mul_u32_u24 v2, 1280, v2")
    p("v_bfe_u32 v3, v1, 1, 2")
    p("v_bfe_u32 v4, v1, 4, 2")
    p("v_xor_b32 v3, v3, v4")
    p("v_and_b32 v4, 1, v1")
    p("v_lshl_add_u32 v3, v3, 1, v4")
    p("v_lshl_add_u32 v2, v3, 4, v2")
    p(f"s_mul_i32 {s(S_T0)}, {s(S_KS)}, {32*1280}")
    p(f"s_mul_i32 {s(S_T1)}, {s(S_WAVE)}, {14*8*1280}")
    p(f"s_add_u32 {s(S_T0)}, {s(S_T0)}, {s(S_T1)}")
    p(f"s_lshl_b32 {s(S_T1)}, {s(S_CG)}, 7")
    p(f"s_add_u32 {s(S_T0)}, {s(S_T0)}, {s(S_T1)}")
    p(f"s_mul_i32 {s(S_T1)}, {s(S_WAVE)}, {14*1024}")
    p(f"s_add_u32 {s(S_T1)}, {s(S_T1)}, {WT_BASE}")
    for i in range(14):
        p(f"s_add_u32 m0, {s(S_T1)}, {1024*i}")
        p(f"buffer_load_dwordx4 v2, {sr(SRD_A,4)}, {s(S_T0)} offen lds")
        if i < 13: p(f"s_add_u32 {s(S_T0)}, {s(S_T0)}, {8*1280}")
    p("v_lshrrev_b32 v3, 4, v1")
    p("v_bfe_u32 v4, v1, 2, 2")
    p("v_lshrrev_b32 v5, 1, v3")
    p("v_lshlrev_b32 v5, 4, v5")
    p("v_and_b32 v6, 1, v3")
    p("v_lshl_add_u32 v5, v6, 2, v5")
    p("v_add_u32 v5, v5, v4")
    p("v_lshrrev_b32 v7, 1, v4")
    p("v_lshl_add_u32 v7, v6, 1, v7")
    p(f"v_xor_b32 v7, {s(S_WAVE)}, v7")
    p("v_lshlrev_b32 v7, 5, v7")
    p("v_lshl_add_u32 v7, v5, 7, v7")
    p("v_and_b32 v6, 3, v1")
    p("v_lshl_add_u32 v7, v6, 3, v7")
    p(f"v_add_u32 v7, {WT_BASE}, v7")
    p("v_lshlrev_b32 v8, 4, v1")
    p(f"s_lshl_b32 {s(S_T0)}, {s(S_CG)}, 2")
    p(f"s_add_u32 {s(S_T0)}, {s(S_T0)}, {s(S_WAVE)}")
    p(f"s_mul_i32 {s(S_T0)}, {s(S_T0)}, 54")
    p(f"s_add_u32 {s(S_T0)}, {s(S_T0)}, {s(S_KS)}")
    p(f"s_lshl_b32 {s(S_T0)}, {s(S_T0)}, 10")
    p(f"s_add_u32 {s(S_T0)}, {s(S_T0)}, {WS_WDF}")
    p("s_waitcnt vmcnt(0)")
    p("s_barrier")
    R = 10
    for k in range(14):
        off = 4096*k
        p(f"ds_read_b64_tr_b16 {vr(R+4*k,2)}, v7 offset:{off}")
        p(f"ds_read_b64_tr_b16 {vr(R+4*k+2,2)}, v7 offset:{off+1024}")
        if k >= 3:
            kk = k - 3
            p("s_waitcnt lgkmcnt(6)")
            p(f"buffer_store_dwordx4 {vr(R+4*kk,4)}, v8, {sr(SRD_WS,4)}, {s(S_T0)} offen{SC}")
            p(f"s_add_u32 {s(S_T0)}, {s(S_T0)}, 1024")
    for kk in range(11, 14):
        if kk == 13:
            lab = p.newlabel('L_wd_skip')
            p(f"s_cmp_ge_u32 {s(S_M)}, 2")
            p(f"s_cbranch_scc1 {lab}")
        p(f"s_waitcnt lgkmcnt({2*(13-kk)})")
        p(f"buffer_store_dwordx4 {vr(R+4*kk,4)}, v8, {sr(SRD_WS,4)}, {s(S_T0)} offen{SC}")
        p(f"s_add_u32 {s(S_T0)}, {s(S_T0)}, 1024")
    p.label(lab)
    p("s_waitcnt lgkmcnt(0)")
```

```python
import sys, re
from common import *
import common
import phA, phK, phB, phP, phC, phD
sys.path.insert(0, 'work')
from build import build
NAME = 'adaLN_cond__ssm_conv_s4d__glu_gated_geglu__prompt'

def body(p):
    entry(p)
    tick(p, 'start')
    S_LINE = 35
    l_noinit = p.newlabel('L_noinit')
    p("s_cmp_eq_u32 s2, 128"); p(f"s_cbranch_scc0 {l_noinit}")
    init_sync(p)
    p.label(l_noinit)
    l_nok = p.newlabel('L_nok'); l_modl = p.newlabel('L_modl'); l_a1done = p.newlabel('L_a1done')
    p("s_cmp_ge_u32 s2, 160"); p(f"s_cbranch_scc1 {l_nok}")
    phK.kgen_loads(p)
    p.label(l_nok)
    p("s_cmp_ge_u32 s2, 128"); p(f"s_cbranch_scc1 {l_modl}")
    phA.ln1_loads(p)
    phA.ln1_compute(p, 0)
    p(f"s_and_b32 {s(S_LINE)}, s2, 7")
    p(f"s_branch {l_a1done}")
    p.label(l_modl)
    p(f"s_and_b32 {s(S_LINE)}, s2, 7")
    p(f"s_add_u32 {s(S_LINE)}, {s(S_LINE)}, {MOD_LINE}")
    l_nomod = p.newlabel('L_nomod')
    p("s_cmp_lt_u32 s2, 136"); p(f"s_cbranch_scc1 {l_nomod}")
    phA.mod_loads(p)
    phA.mod_compute(p, 0)
    p(f"s_branch {l_a1done}")
    p.label(l_nomod)
    p("s_waitcnt vmcnt(0)")
    p.label(l_a1done)
    tick(p, 'A1')
    l_prep = p.newlabel('L_prep'); l_Bdone = p.newlabel('L_Bdone')
    p("s_cmp_ge_u32 s2, 160"); p(f"s_cbranch_scc1 {l_prep}")
    def mid(p):
        l = p.newlabel('L_noarr')
        p("s_cmp_ge_u32 s2, 136"); a1 = p.newlabel('L_arr'); p(f"s_cbranch_scc1 {a1}")
        p("s_cmp_ge_u32 s2, 128"); p(f"s_cbranch_scc1 {l}")
        p.label(a1)
        wait_init(p, 2, 3)
        arrive(p, S_LINE, 2, 3)
        p.label(l)
        phB.conv_xloads(p)
    phK.kgen(p, mid)
    wait_lines(p, [(LN_LINE, [16]*8 + [15]*8)], 2, 3, 4)
    tick(p, 'B1_passed')
    phB.conv(p)
    p(f"s_and_b32 {s(S_LINE)}, s2, 7")
    p(f"s_add_u32 {s(S_LINE)}, {s(S_LINE)}, {CONV_LINE}")
    arrive(p, S_LINE, 2, 3)
    tick(p, 'conv_arr')
    p(f"s_branch {l_Bdone}")
    p.label(l_prep)
    wait_init(p, 2, 3)
    arrive(p, S_LINE, 2, 3)
    l_wd = p.newlabel('L_wd'); l_pd = p.newlabel('L_pdone')
    p("s_cmp_ge_u32 s2, 214"); p(f"s_cbranch_scc1 {l_wd}")
    phP.wprep_dma(p)
    wait_lines(p, [(MOD_LINE, [15]*8)], 10, 11, 12)
    tick(p, 'P_mod')
    phP.wprep(p)
    p(f"s_sub_u32 {s(S_LINE)}, s2, 160")
    p(f"s_and_b32 {s(S_LINE)}, {s(S_LINE)}, 7")
    p(f"s_add_u32 {s(S_LINE)}, {s(S_LINE)}, {WP_LINE}")
    arrive(p, S_LINE, 2, 3)
    p(f"s_branch {l_pd}")
    p.label(l_wd)
    p("s_cmp_ge_u32 s2, 254"); p(f"s_cbranch_scc1 {l_pd}")
    phP.wdprep(p)
    p(f"s_sub_u32 {s(S_LINE)}, s2, 214")
    p(f"s_and_b32 {s(S_LINE)}, {s(S_LINE)}, 7")
    p(f"s_add_u32 {s(S_LINE)}, {s(S_LINE)}, {WD_LINE}")
    arrive(p, S_LINE, 2, 3)
    p.label(l_pd)
    tick(p, 'P_done')
    p.label(l_Bdone)
    phC.ids(p)
    wait_lines(p, [(WP_LINE, [7]*6 + [6]*2 + [5]*8)], 2, 3, 4)
    tick(p, 'WP_ok')
    phC.prefetch(p)
    tick(p, 'g1_pref')
    p("s_waitcnt vmcnt(0)")
    wait_lines(p, [(CONV_LINE, [20]*8)], 2, 3, 4)
    tick(p, 'B2_passed')
    wd_next = phC.main(p)
    p(f"s_add_u32 {s(S_LINE)}, {s(phC.S_MT)}, {C_LINE}")
    arrive(p, S_LINE, 2, 3)
    tick(p, 'g1_arr')
    phD.prefetch(p, wd_next)
    p(f"s_lshr_b32 {s(S_LINE)}, {s(phC.S_MT2)}, 1")
    p(f"s_add_u32 {s(S_LINE)}, {s(S_LINE)}, {C_LINE}")
    tick(p, 'g2_pref')
    p("s_waitcnt vmcnt(0)")
    wait_lines(p, [('s', S_LINE, 16)], 2, 3, 4)
    tick(p, 'B3_passed')
    phD.main(p)
    dump_ticks(p)
    p("s_waitcnt vmcnt(0) lgkmcnt(0)")
    p.label("L_exit")
    p("s_endpgm")

def gen(name, stamps=False):
    cfg.stamps = stamps
    common.TICKNAMES.clear()
    p = Prog()
    body(p)
    p.fix()
    errs = p.verify()
    txt = re.sub(r'\bL_(\w+)', lambda m: f'L_{m.group(1)}', p.text())
    return kernel_text(name, txt), errs

if __name__ == '__main__':
    HDR = open(f'cdna_kernels/{NAME}.s.ref').read().split('; Override launch')[0]
    t, errs = gen(NAME + '_kernel')
    for e in errs[:30]: print('ERR', e)
    out = HDR + "; @launch grid=(256,1,1) block=(256,1,1) lds=163840\n" + '.amdgcn_target "amdgcn-amd-amdhsa--gfx950"\n' + t
    open('fused.s', 'w').write(out)
    print('fused.s', len(out), build('fused.s', 'fused.co'))
    t, errs = gen('fusedst', stamps=True)
    for e in errs[:30]: print('ERR(st)', e)
    open('fusedst.s', 'w').write('.amdgcn_target "amdgcn-amd-amdhsa--gfx950"\n' + t)
    build('fusedst.s', 'fusedst.co')
    import json; json.dump(common.TICKNAMES, open('ticks.json', 'w'))
```

```python
import sys
sys.path.insert(0, 'work')
from dsl import *
import struct, math

L, D, NMODE, DF = 2048, 640, 128, 1728
KA = dict(x=0, logA=8, Aim=16, Cre=24, Cim=32, logdt=40, dskip=48, Bx=56, Wg=64, Wu=72, Wd=80, c=88, wmod=96, out=104, dbg=112, ws=120)
WS_BYTES = 0x2000000
NB = dict(x=L*D*2, logA=D*NMODE*2, Aim=D*NMODE*2, Cre=D*NMODE*2, Cim=D*NMODE*2, logdt=D*2, dskip=D*2,
          Wg=D*DF*2, Wu=D*DF*2, Wd=DF*D*2, c=D*2, wmod=D*6*D*2, out=L*D*2, dbg=256, ws=WS_BYTES)
SLAB = 41*1024
WS_NF   = 0x0000000
WS_X1F  = 0x0280000
WS_MODP = 0x0500000
WS_SYNC = 0x0520000
WS_WPF  = 0x0600000
WS_WDF  = 0x0A60000
WS_H2F  = 0x0C80000
WS_STAMP = 0x1F00000
SC = ' sc1'
LN_LINE, MOD_LINE, CONV_LINE, WP_LINE, WD_LINE, C_LINE = 0, 8, 16, 24, 32, 40

S_WAVE = 4
S_T0 = 5; S_T1 = 6; S_T2 = 7
SRD_WS = 8
SRD_A = 12; SRD_B = 16; SRD_C = 20; SRD_D = 24; SRD_E = 28
S_EX = 36
KARG = 64
LOG2E = 1.4426950408889634
VTICK = 255

class Cfg:
    stamps = False
    fused = True
cfg = Cfg()

def f2u(x): return struct.unpack('<I', struct.pack('<f', x))[0]
def fl(x): return hex(f2u(x))
def ptr(name): return KARG + KA[name]//4

def mksrd(p, srd, name):
    p(f"s_mov_b32 {s(srd)}, {s(ptr(name))}")
    p(f"s_mov_b32 {s(srd+1)}, {s(ptr(name)+1)}")
    p(f"s_mov_b32 {s(srd+2)}, {hex(NB[name])}")
    p(f"s_mov_b32 {s(srd+3)}, 0x00020000")

def entry(p, nwg=256):
    p(f"s_cmp_ge_u32 s2, {nwg}")
    p("s_cbranch_scc1 L_exit")
    p(f"s_load_dwordx16 {sr(KARG,16)}, s[0:1], 0")
    p(f"s_load_dwordx16 {sr(KARG+16,16)}, s[0:1], 64")
    p("v_lshrrev_b32 v1, 6, v0")
    p("s_nop 0")
    p(f"v_readfirstlane_b32 {s(S_WAVE)}, v1")
    p("v_and_b32 v1, 63, v0")
    if cfg.stamps: p(f"v_mov_b32 v{VTICK}, 0")
    p("s_waitcnt lgkmcnt(0)")
    mksrd(p, SRD_WS, 'ws')

def row16_sum(p, r):
    for k in (8, 4, 2, 1):
        p(f"v_add_f32_dpp {v(r)}, {v(r)}, {v(r)} row_ror:{k} row_mask:0xf bank_mask:0xf")

def cross_row_sum(p, r, t):
    p(f"v_mov_b32 {v(t)}, {v(r)}")
    p(f"v_permlane16_swap_b32 {v(t)}, {v(r)}")
    p(f"v_add_f32 {v(r)}, {v(r)}, {v(t)}")
    p(f"v_mov_b32 {v(t)}, {v(r)}")
    p(f"v_permlane32_swap_b32 {v(t)}, {v(r)}")
    p(f"v_add_f32 {v(r)}, {v(r)}, {v(t)}")

def unpack(p, lo, hi, src):
    p(f"v_lshlrev_b32 {v(lo)}, 16, {v(src)}")
    p(f"v_and_b32 {v(hi)}, 0xffff0000, {v(src)}")

def rbf(p, r):
    p(f"v_cvt_pk_bf16_f32 {v(r)}, {v(r)}, {v(r)}")
    p(f"v_lshlrev_b32 {v(r)}, 16, {v(r)}")

NTICK = [0]
TICKNAMES = {}
def tick(p, name):
    if not cfg.stamps: return
    if name not in TICKNAMES: TICKNAMES[name] = len(TICKNAMES)
    k = TICKNAMES[name]
    assert k < 64
    p("s_memtime s[96:97]")
    p("s_waitcnt lgkmcnt(0)")
    p(f"v_writelane_b32 v{VTICK}, s96, {k}")
def dump_ticks(p):
    if not cfg.stamps: return
    p("s_waitcnt vmcnt(0)")
    tick(p, 'end')
    p("s_memrealtime s[96:97]")
    p("s_waitcnt lgkmcnt(0)")
    p(f"v_writelane_b32 v{VTICK}, s96, 63")
    p("s_lshl_b32 s96, s2, 2")
    p(f"s_add_u32 s96, s96, {s(S_WAVE)}")
    p("s_lshl_b32 s96, s96, 8")
    p(f"s_add_u32 s96, s96, {WS_STAMP}")
    p("v_lshlrev_b32 v2, 2, v1")
    p(f"buffer_store_dword v{VTICK}, v2, {sr(SRD_WS,4)}, s96 offen")

def wave0_begin(p):
    lab = p.newlabel('L_w0')
    p(f"s_cmp_eq_u32 {s(S_WAVE)}, 0")
    p(f"s_cbranch_scc0 {lab}")
    return lab

def arrive(p, line_sgpr, t0, t1, guard=None):
    if not cfg.fused:
        return
    p("s_waitcnt vmcnt(0)")
    p("s_barrier")
    lab = wave0_begin(p)
    p(f"s_lshl_b32 s96, {s(line_sgpr)}, 7")
    p(f"s_add_u32 s96, s96, {WS_SYNC}")
    p(f"v_mov_b32 {v(t0)}, 1")
    p(f"v_mov_b32 {v(t1)}, 0")
    p(f"s_mov_b64 {sr(S_EX,2)}, exec")
    p("s_mov_b64 exec, 1")
    p(f"buffer_atomic_add {v(t0)}, {v(t1)}, {sr(SRD_WS,4)}, s96 offen sc1")
    p(f"s_mov_b64 exec, {sr(S_EX,2)}")
    p.label(lab)

SPIN_MAX = 1 << 16
def poll(p, srd, addr_v, nl, cond_fn, tmp, soff='0'):
    lab = p.newlabel('L_poll'); done = p.newlabel('L_polld')
    p(f"s_mov_b64 {sr(S_EX,2)}, exec")
    p(f"s_mov_b64 exec, {hex((1 << nl) - 1)}")
    p("s_mov_b32 s97, 0")
    p.label(lab)
    p(f"buffer_load_dword {v(tmp)}, {v(addr_v)}, {sr(srd,4)}, {soff} offen sc1")
    p("s_waitcnt vmcnt(0)")
    cond_fn()
    p(f"s_cbranch_vccz {done}")
    p("s_add_u32 s97, s97, 1")
    p(f"s_cmp_lt_u32 s97, {SPIN_MAX}")
    p(f"s_cbranch_scc1 {lab}")
    p.label(done)
    p(f"s_mov_b64 exec, {sr(S_EX,2)}")

def wait_lines(p, specs, t0, t1, t2):
    if not cfg.fused:
        p("s_barrier"); return
    lab = wave0_begin(p)
    if specs[0][0] == 's':
        _, sg, tgt = specs[0]
        p(f"s_lshl_b32 s96, {s(sg)}, 7")
        p(f"s_add_u32 s96, s96, {WS_SYNC}")
        p(f"v_mov_b32 {v(t0)}, s96")
        p(f"v_mov_b32 {v(t1)}, {tgt}")
        nl = 1
    else:
        lines = []; tg = []
        for l0, ts in specs:
            for i, t in enumerate(ts): lines.append(l0 + i); tg.append(t)
        nl = len(lines)
        p(f"v_mov_b32 {v(t0)}, {WS_SYNC}")
        p(f"v_mov_b32 {v(t1)}, 0")
        contiguous = all(lines[i] == lines[0] + i for i in range(nl))
        assert contiguous
        p(f"v_lshlrev_b32 {v(t2)}, 7, v1")
        p(f"v_add_u32 {v(t0)}, {WS_SYNC + 128*lines[0]}, {v(t2)}")
        base = max(set(tg), key=tg.count)
        p(f"v_mov_b32 {v(t1)}, {base}")
        for i, t in enumerate(tg):
            if t != base:
                p(f"s_mov_b32 s96, {t}")
                p(f"v_writelane_b32 {v(t1)}, s96, {i}")
    poll(p, SRD_WS, t0, nl, lambda: p(f"v_cmp_lt_u32 vcc, {v(t2)}, {v(t1)}"), t2)
    p.label(lab)
    p("s_barrier")

def init_sync(p):
    if not cfg.fused: return
    for k in range(4): p(f"v_mov_b32 {v(4+k)}, 0")
    p("v_lshlrev_b32 v2, 4, v0")
    p(f"s_mov_b32 s96, {WS_SYNC}")
    p(f"buffer_store_dwordx4 v[4:7], v2, {sr(SRD_WS,4)}, s96 offen sc1")
    p(f"s_add_u32 s96, s96, 4096")
    p(f"buffer_store_dwordx4 v[4:7], v2, {sr(SRD_WS,4)}, s96 offen sc1")
    p("s_waitcnt vmcnt(0)")
    p("s_barrier")
    lab = wave0_begin(p)
    mksrd(p, SRD_E, 'dbg')
    p("v_mov_b32 v4, 1")
    p("v_mov_b32 v5, 0")
    p(f"s_mov_b64 {sr(S_EX,2)}, exec")
    p("s_mov_b64 exec, 1")
    p(f"buffer_store_dword v4, v5, {sr(SRD_E,4)}, 0 offen sc1")
    p(f"s_mov_b64 exec, {sr(S_EX,2)}")
    p.label(lab)

def wait_init(p, t0, t1):
    if not cfg.fused: return
    lab = wave0_begin(p)
    mksrd(p, SRD_E, 'dbg')
    p(f"v_mov_b32 {v(t0)}, 0")
    poll(p, SRD_E, t0, 1, lambda: p(f"v_cmp_eq_u32 vcc, 0, {v(t1)}"), t1)
    p.label(lab)

def kernel_text(name, body, vgpr=256, agpr=256, sgpr=102):
    acc = (vgpr + 3)//4*4
    return f""".text
.globl {name}
.p2align 8
.type {name},@function
{name}:
{body}
.section .rodata,"a"
.p2align 6
.amdhsa_kernel {name}
  .amdhsa_next_free_vgpr {acc + agpr if agpr else vgpr}
  .amdhsa_next_free_sgpr {sgpr}
  .amdhsa_accum_offset {acc}
  .amdhsa_group_segment_fixed_size 0
  .amdhsa_kernarg_size 128
  .amdhsa_user_sgpr_count 2
  .amdhsa_user_sgpr_kernarg_segment_ptr 1
  .amdhsa_system_sgpr_workgroup_id_x 1
.end_amdhsa_kernel
"""

NPF = 2
def code_prefetch(p, kname):
    p("s_getpc_b64 s[98:99]")
    p.label("L_pc")
    p(f"s_sub_u32 {s(SRD_E)}, s98, (L_pc-{kname})")
    p(f"s_subb_u32 {s(SRD_E+1)}, s99, 0")
    p(f"s_mov_b32 {s(SRD_E+2)}, (L_codeend-{kname})")
    p(f"s_mov_b32 {s(SRD_E+3)}, 0x00020000")
    p("v_lshlrev_b32 v253, 7, v0")
    for k in range(NPF):
        p(f"s_mov_b32 s98, {32768*k}")
        p(f"buffer_load_dword v254, v253, {sr(SRD_E,4)}, s98 offen")
```

```python
from common import *
KC_STRIDE = 4160
KC_BYTES = 4*KC_STRIDE
U_OFF = KC_BYTES
U_PAD = 480
U_BYTES = U_PAD + 4096
WSTRIDE = KC_BYTES + U_BYTES
S_G = 40; S_D = 41; S_LB = 42
IN = 100; DT = 108

def conv_ids(p):
    p(f"s_and_b32 {s(S_G)}, s2, 7")
    p(f"s_mul_i32 {s(S_G)}, {s(S_G)}, 20")
    p(f"s_lshr_b32 {s(S_T0)}, s2, 3")
    p(f"s_add_u32 {s(S_G)}, {s(S_G)}, {s(S_T0)}")
    p(f"s_lshl_b32 {s(S_D)}, {s(S_G)}, 2")
    p(f"s_add_u32 {s(S_D)}, {s(S_D)}, {s(S_WAVE)}")
    p(f"s_mul_i32 {s(S_LB)}, {s(S_WAVE)}, {WSTRIDE}")

def cmul(dst, x, y, t):
    return [f"v_pk_mul_f32 {vr(t,2)}, {vr(x,2)}, {vr(y,2)} op_sel:[0,0] op_sel_hi:[0,1]",
            f"v_pk_fma_f32 {vr(dst,2)}, {vr(x,2)}, {vr(y,2)}, {vr(t,2)} op_sel:[1,1,0] op_sel_hi:[1,0,1] neg_lo:[1,0,0]"]

NKLOADS = 9
def kgen_loads(p):
    p.c("---- Kgen loads ----")
    conv_ids(p)
    mksrd(p, SRD_B, 'logdt')
    p(f"s_lshl_b32 {s(S_T0)}, {s(S_D)}, 8")
    p(f"s_lshl_b32 {s(S_T1)}, {s(S_D)}, 1")
    p("v_lshlrev_b32 v8, 1, v1")
    p("v_mov_b32 v9, 0")
    p(f"buffer_load_ushort {v(DT)}, v9, {sr(SRD_B,4)}, {s(S_T1)} offen")
    for k, nm in enumerate(['logA', 'Aim', 'Cre', 'Cim']):
        mksrd(p, SRD_C, nm)
        for ps in range(2):
            p(f"buffer_load_ushort {v(IN+4*ps+k)}, v8, {sr(SRD_C,4)}, {s(S_T0)} offen offset:{128*ps}")

def kgen(p, mid=None):
    p.c("---- Kgen ----")
    AW = 20; AR = 36; ACC = 40
    p("v_lshrrev_b32 v4, 2, v1")
    p("v_and_b32 v5, 3, v1")
    p("v_lshlrev_b32 v5, 2, v5")
    p(f"v_add_u32 v5, {s(S_LB)}, v5")
    for x in range(16):
        p(f"v_xor_b32 v6, {x}, v4")
        p(f"v_lshl_add_u32 {v(AW+x)}, v6, 4, v5")
    p("v_and_b32 v4, 15, v1")
    p("v_lshrrev_b32 v5, 4, v1")
    p("v_lshlrev_b32 v7, 8, v4")
    p(f"v_add_u32 v7, {s(S_LB)}, v7")
    for q in range(4):
        p(f"v_add_u32 v6, {4*q}, v5")
        p("v_xor_b32 v6, v6, v4")
        p(f"v_lshl_add_u32 {v(AR+q)}, v6, 4, v7")
    for k in range(12): p(f"v_mov_b32 {v(ACC+k)}, 0")
    p(f"v_lshlrev_b32 {v(DT)}, 16, {v(DT)}")
    p(f"v_mul_f32 {v(DT)}, {fl(LOG2E)}, {v(DT)}")
    p(f"v_exp_f32 {v(DT)}, {v(DT)}")
    rbf(p, DT)
    for k in range(8): p(f"v_lshlrev_b32 {v(IN+k)}, 16, {v(IN+k)}")
    SCNT = 43
    p(f"s_mov_b32 {s(SCNT)}, 0")
    Z = 52
    def z(b): return Z + 2*(b-1)
    Z8 = 66; E1 = 68; EC = 70; EN = 72; VC = 74; VN = 76; T1 = 78; T2 = 80; T3 = 82; PR = 84
    AL = 86; PK = 88; PR2 = 92; T4 = 94
    FR = 112
    tick(p, 'k_setup')
    lab = p.newlabel('L_kpass')
    p.loop_begin(lab)
    p(f"v_mul_f32 {v(T1)}, {fl(LOG2E)}, {v(IN)}")
    p(f"v_exp_f32 {v(T1)}, {v(T1)}")
    rbf(p, T1)
    p(f"v_mul_f32 {v(T1)}, {v(T1)}, {v(DT)}")
    p(f"v_mul_f32 {v(AL)}, {fl(-LOG2E)}, {v(T1)}")
    p(f"v_mul_f32 {v(T1)}, {v(IN+1)}, {v(DT)}")
    p(f"v_mul_f32 {v(AL+1)}, {fl(1.0/(2*math.pi))}, {v(T1)}")
    p(f"v_mul_f32 {v(VC)}, {v(IN+2)}, {v(DT)}")
    p(f"v_mul_f32 {v(VC+1)}, {v(IN+3)}, {v(DT)}")
    p(f"v_add_f32 {v(VC)}, {v(VC)}, {v(VC)}")
    p(f"v_add_f32 {v(VC+1)}, {v(VC+1)}, {v(VC+1)}")
    bases = [(z(1), 1.0, T1), (Z8, 8.0, T2), (E1, 128.0, T3)]
    for dst, pw, t in bases: p(f"v_mul_f32 {v(t)}, {fl(pw)}, {v(AL)}")
    for dst, pw, t in bases: p(f"v_mul_f32 {v(t+1)}, {fl(pw)}, {v(AL+1)}")
    for dst, pw, t in bases: p(f"v_exp_f32 {v(t)}, {v(t)}")
    for dst, pw, t in bases: p(f"v_fract_f32 {v(t+1)}, {v(t+1)}")
    for dst, pw, t in bases: p(f"v_cos_f32 {v(dst)}, {v(t+1)}")
    for dst, pw, t in bases: p(f"v_sin_f32 {v(dst+1)}, {v(t+1)}")
    for dst, pw, t in bases: p(f"v_pk_mul_f32 {vr(dst,2)}, {vr(dst,2)}, {vr(t,2)} op_sel_hi:[1,0]")
    tick(p, 'k_bases')
    pkc = [0, 0]
    def wr(e, r, neg):
        pool = 1 if neg else 0
        t = PK + 2*pool + (pkc[pool] & 1); pkc[pool] += 1
        sign = '-' if neg else ''
        return [f"v_cvt_pk_bf16_f32 {v(t)}, {v(r)}, {sign}{v(r+1)}",
                f"ds_write_b32 {v(AW + (e & 15))}, {v(t)} offset:{256*e}"]
    B = []
    cur, nxt = VC, VN
    for j in range(16):
        B += wr(j, cur, False)
        if j < 15:
            B += cmul(nxt, cur, Z8, T3); cur, nxt = nxt, cur
    Wl = []
    Wl += cmul(z(2), z(1), z(1), T1)
    Wl += cmul(EC, E1, E1, T4)
    Wl += cmul(z(3), z(2), z(1), T2)
    Wl += cmul(z(4), z(2), z(2), T1)
    Wl += wr(16+1, z(1), True)
    Wl += cmul(z(5), z(4), z(1), T2)
    Wl += wr(16+2, z(2), True)
    Wl += cmul(z(6), z(3), z(3), T1)
    Wl += wr(16+3, z(3), True)
    Wl += cmul(z(7), z(4), z(3), T2)
    Wl += [f"v_mov_b32 {v(PK+3)}, 0x3f80", f"ds_write_b32 {v(AW+0)}, {v(PK+3)} offset:{256*16}"]
    for b in range(4, 8): Wl += wr(16+b, z(b), True)
    Wl += wr(16+8, E1, True)
    prs = [PR, PR2]; ts = [T1, T2]; pc = 0
    for b in range(1, 8):
        Wl += cmul(prs[pc & 1], E1, z(b), ts[pc & 1]); Wl += wr(16+8+b, prs[pc & 1], True); pc += 1
    ecur, enxt = EC, EN
    for al in range(2, 17):
        nxt_ops = cmul(enxt, ecur, E1, T4) if al < 16 else []
        Wl += nxt_ops
        if al in (2, 3):
            base = 32 + 4*(al-2)
            Wl += wr(base, ecur, True)
            for k, b in enumerate((2, 4, 6)):
                Wl += cmul(prs[pc & 1], ecur, z(b), ts[pc & 1]); Wl += wr(base+1+k, prs[pc & 1], True); pc += 1
        elif al in (4, 5, 6, 7):
            base = 32 + 8 + 2*(al-4)
            Wl += wr(base, ecur, True)
            Wl += cmul(prs[pc & 1], ecur, z(4), ts[pc & 1]); Wl += wr(base+1, prs[pc & 1], True); pc += 1
        else:
            Wl += wr(48 + (al-8), ecur, True)
        ecur, enxt = enxt, ecur
    for x in interleave(Wl, B): p(x)
    tick(p, 'k_tables')
    for q in range(4):
        for tb in range(4):
            p(f"ds_read_b128 {vr(FR+16*q+4*tb,4)}, {v(AR+q)} offset:{4096*tb}")
    for q in range(4):
        p(f"s_waitcnt lgkmcnt({12-4*q})")
        for t in range(3):
            p(f"v_mfma_f32_16x16x32_bf16 {vr(ACC+4*t,4)}, {vr(FR+16*q+4*(t+1),4)}, {vr(FR+16*q,4)}, {vr(ACC+4*t,4)}")
    for k in range(4): p(f"v_mov_b32 {v(IN+k)}, {v(IN+4+k)}")
    if mid is not None:
        lm = p.newlabel('L_kmid')
        p(f"s_cmp_eq_u32 {s(SCNT)}, 0")
        p(f"s_cbranch_scc0 {lm}")
        tick(p, 'k_pass0')
        mid(p)
        tick(p, 'k_mid')
        p.label(lm)
    p(f"s_add_u32 {s(SCNT)}, {s(SCNT)}, 1")
    p(f"s_cmp_lt_u32 {s(SCNT)}, 2")
    p(f"s_cbranch_scc1 {lab}")
    p.loop_end()
    tick(p, 'kgen_passes')
    p("v_and_b32 v4, 15, v1")
    p("v_lshrrev_b32 v5, 4, v1")
    p(f"s_add_u32 {s(S_T0)}, {s(S_LB)}, {U_OFF}")
    p("v_and_b32 v6, 1, v5")
    p("v_lshrrev_b32 v7, 1, v5")
    p("v_lshlrev_b32 v8, 4, v4")
    p("v_lshl_add_u32 v8, v6, 3, v8")
    p("v_lshl_add_u32 v8, v7, 8, v8")
    p(f"v_add_u32 v8, {s(S_T0)}, v8")
    p("v_lshlrev_b32 v9, 2, v4")
    p("v_lshlrev_b32 v2, 1, v4")
    p("v_cmp_gt_u32 vcc, 2, v5")
    p("v_cndmask_b32 v9, v2, v9, vcc")
    p("v_lshl_add_u32 v9, v5, 6, v9")
    p("v_add_u32 v9, 256, v9")
    p("v_mov_b32 v2, 32")
    p("v_mov_b32 v3, 2")
    p("v_cndmask_b32 v2, v2, v3, vcc")
    p("v_add_u32 v2, v2, v9")
    p("v_lshlrev_b32 v9, 1, v9")
    p("v_lshlrev_b32 v2, 1, v2")
    p(f"v_add_u32 v9, {s(S_T0)}, v9")
    p(f"v_add_u32 v2, {s(S_T0)}, v2")
    p("v_lshl_add_u32 v3, v5, 6, v4")
    p("v_lshlrev_b32 v3, 1, v3")
    p(f"s_add_u32 {s(S_T1)}, {s(S_T0)}, 1024")
    p(f"v_add_u32 v3, {s(S_T1)}, v3")
    O = 60
    p(f"v_cvt_pk_bf16_f32 {v(O)}, {v(ACC)}, {v(ACC+1)}")
    p(f"v_cvt_pk_bf16_f32 {v(O+1)}, {v(ACC+2)}, {v(ACC+3)}")
    p(f"ds_write_b64 v8, {vr(O,2)}")
    p(f"v_cvt_pk_bf16_f32 {v(O+2)}, {v(ACC+4)}, {v(ACC+5)}")
    p(f"v_cvt_pk_bf16_f32 {v(O+3)}, {v(ACC+6)}, {v(ACC+7)}")
    p(f"ds_write_b32 v9, {v(O+2)}")
    p(f"ds_write_b32 v2, {v(O+3)}")
    for i in range(4):
        p(f"v_cvt_pk_bf16_f32 {v(O+4+i)}, {v(ACC+8+i)}, {v(ACC+8+i)}")
        p(f"ds_write_b16 v3, {v(O+4+i)} offset:{32*i}")
    for k in range(4): p(f"v_mov_b32 {v(O+k)}, 0")
    p("v_lshrrev_b32 v4, 1, v1")
    p(f"v_mul_u32_u24 v4, {KC_STRIDE}, v4")
    p("v_and_b32 v5, 1, v1")
    p("v_lshl_add_u32 v4, v5, 4, v4")
    p(f"v_add_u32 v4, {s(S_LB)}, v4")
    p(f"s_mov_b64 {sr(S_EX,2)}, exec")
    p("s_mov_b64 exec, 0xff")
    p(f"ds_write_b128 v4, {vr(O,4)}")
    p(f"s_mov_b64 exec, {sr(S_EX,2)}")
    p("v_lshlrev_b32 v8, 4, v1")
    p(f"s_add_u32 {s(S_T1)}, {s(S_LB)}, 32")
    p(f"v_add_u32 v8, {s(S_T1)}, v8")
    Dd = 64
    p("v_lshlrev_b32 v4, 4, v1")
    p("v_lshlrev_b32 v5, 3, v1")
    p("v_add_u32 v5, 256, v5")
    p("v_cmp_gt_u32 vcc, 32, v1")
    p("v_cndmask_b32 v4, v5, v4, vcc")
    p(f"v_add_u32 v4, {s(S_T0)}, v4")
    p(f"ds_read_b64 {vr(Dd,2)}, v4")
    p(f"ds_read_b64 {vr(Dd+2,2)}, v4 offset:8")
    p("v_lshlrev_b32 v4, 2, v1")
    p(f"s_add_u32 {s(S_T1)}, {s(S_T0)}, 768")
    p(f"v_add_u32 v4, {s(S_T1)}, v4")
    p(f"ds_read2_b32 {vr(Dd+4,2)}, v4 offset0:0 offset1:1")
    p("v_lshrrev_b32 v4, 1, v1")
    p("v_lshlrev_b32 v4, 2, v4")
    p(f"s_add_u32 {s(S_T1)}, {s(S_T0)}, 1024")
    p(f"v_add_u32 v4, {s(S_T1)}, v4")
    p(f"ds_read2_b32 {vr(Dd+6,2)}, v4 offset0:0 offset1:1")
    p(f"ds_read2_b32 {vr(Dd+8,2)}, v4 offset0:32 offset1:33")
    Oo = 76; C1 = 80; C2 = 84; C3 = 88; P2 = 92; SEL = 93
    SC2, SC3 = 44, 45
    p(f"s_mov_b32 {s(SC2)}, 0"); p(f"s_mov_b32 {s(SC3)}, 0")
    LL, HH, HL, ID, S0ID, S0LL = 0x01000100, 0x03020302, 0x05040302, 0x03020100, 0x07060504, 0x05040504
    def copies(it):
        p(f"v_mov_b32 {v(C2)}, {s(SC3)}")
        p(f"v_mov_b32 {v(P2)}, {s(SC2)}")
        p(f"ds_write_b128 v8, {vr(Oo,4)} offset:{1024*it}")
        p(f"v_mov_b32_dpp {v(C2)}, {v(Oo+3)} wave_shr:1 row_mask:0xf bank_mask:0xf")
        p(f"v_mov_b32_dpp {v(P2)}, {v(Oo+2)} wave_shr:1 row_mask:0xf bank_mask:0xf")
        if it < 3:
            p(f"v_readlane_b32 {s(SC3)}, {v(Oo+3)}, 63")
            p(f"v_readlane_b32 {s(SC2)}, {v(Oo+2)}, 63")
        p(f"v_alignbit_b32 {v(C1+1)}, {v(Oo+1)}, {v(Oo)}, 16")
        p(f"v_alignbit_b32 {v(C1+2)}, {v(Oo+2)}, {v(Oo+1)}, 16")
        p(f"v_alignbit_b32 {v(C1+3)}, {v(Oo+3)}, {v(Oo+2)}, 16")
        for k in range(3): p(f"v_mov_b32 {v(C2+1+k)}, {v(Oo+k)}")
        p(f"v_alignbit_b32 {v(C1)}, {v(Oo)}, {v(C2)}, 16")
        p(f"v_alignbit_b32 {v(C3)}, {v(C2)}, {v(P2)}, 16")
        p(f"ds_write_b128 v8, {vr(C2,4)} offset:{1024*it + 2*KC_STRIDE}")
        for k in range(3): p(f"v_mov_b32 {v(C3+1+k)}, {v(C1+k)}")
        p(f"ds_write_b128 v8, {vr(C1,4)} offset:{1024*it + KC_STRIDE}")
        p(f"ds_write_b128 v8, {vr(C3,4)} offset:{1024*it + 3*KC_STRIDE}")
    def selv(r, lo, hi):
        p(f"v_mov_b32 {v(r)}, {hex(hi)}")
        p(f"v_mov_b32 v5, {hex(lo)}")
        p(f"v_cndmask_b32 {v(r)}, {v(r)}, v5, vcc")
    selv(SEL, ID, LL); selv(SEL+1, S0ID, HL); selv(SEL+2, S0ID, LL)
    p(f"s_mov_b32 {s(S_T2)}, {hex(HL)}")
    p("s_waitcnt lgkmcnt(0)")
    p(f"v_perm_b32 {v(Oo)}, {v(Dd)}, {v(Dd)}, {v(SEL)}")
    p(f"v_perm_b32 {v(Oo+1)}, {v(Dd+1)}, {v(Dd)}, {v(SEL+1)}")
    p(f"v_perm_b32 {v(Oo+2)}, {v(Dd+2)}, {v(Dd+1)}, {v(SEL+2)}")
    p(f"v_perm_b32 {v(Oo+3)}, {v(Dd+2)}, {v(Dd+1)}, {s(S_T2)}")
    p(f"v_cndmask_b32 {v(Oo+3)}, {v(Oo+3)}, {v(Dd+3)}, vcc")
    copies(0)
    p(f"s_mov_b32 {s(S_T1)}, {hex(LL)}")
    p(f"s_mov_b32 {s(S_T2)}, {hex(HH)}")
    d = Dd + 4
    p(f"v_perm_b32 {v(Oo)}, {v(d)}, {v(d)}, {s(S_T1)}")
    p(f"v_mov_b32 {v(Oo+1)}, {v(d)}")
    p(f"v_perm_b32 {v(Oo+2)}, {v(d)}, {v(d)}, {s(S_T2)}")
    p(f"v_perm_b32 {v(Oo+3)}, {v(d+1)}, {v(d+1)}, {s(S_T1)}")
    copies(1)
    p("v_and_b32 v5, 1, v1")
    p("v_cmp_eq_u32 vcc, 0, v5")
    selv(SEL, LL, HH); selv(SEL+1, ID, S0LL); selv(SEL+2, HH, S0LL)
    for it in (2, 3):
        d = Dd + 6 + 2*(it-2)
        p(f"v_perm_b32 {v(Oo)}, {v(d)}, {v(d)}, {v(SEL)}")
        p(f"v_mov_b32 {v(Oo+1)}, {v(Oo)}")
        p(f"v_perm_b32 {v(Oo+2)}, {v(d+1)}, {v(d)}, {v(SEL+1)}")
        p(f"v_perm_b32 {v(Oo+3)}, {v(d+1)}, {v(d)}, {v(SEL+2)}")
        copies(it)
    tick(p, 'kgen_done')
```

```python
import sys, re
from common import *
import common
import phA, phK, phB, phP, phC, phD
sys.path.insert(0, 'work')
from build import build
NAME = 'adaLN_cond__ssm_conv_s4d__glu_gated_geglu__prompt'

def body(p, kname, pf):
    entry(p)
    tick(p, 'start')
    S_LINE = 35
    l_noinit = p.newlabel('L_noinit')
    p("s_cmp_eq_u32 s2, 128"); p(f"s_cbranch_scc0 {l_noinit}")
    init_sync(p)
    p.label(l_noinit)
    l_nok = p.newlabel('L_nok'); l_modl = p.newlabel('L_modl'); l_a1done = p.newlabel('L_a1done')
    p("s_cmp_ge_u32 s2, 160"); p(f"s_cbranch_scc1 {l_nok}")
    phK.kgen_loads(p)
    p.label(l_nok)
    p("s_cmp_ge_u32 s2, 128"); p(f"s_cbranch_scc1 {l_modl}")
    phA.ln1_loads(p)
    if pf: code_prefetch(p, kname)
    phA.ln1_compute(p, NPF if pf else 0)
    p("s_waitcnt vmcnt(5)")
    p(f"s_and_b32 {s(S_LINE)}, s2, 7")
    p(f"s_branch {l_a1done}")
    p.label(l_modl)
    p(f"s_and_b32 {s(S_LINE)}, s2, 7")
    p(f"s_add_u32 {s(S_LINE)}, {s(S_LINE)}, {MOD_LINE}")
    l_nomod = p.newlabel('L_nomod')
    p("s_cmp_lt_u32 s2, 136"); p(f"s_cbranch_scc1 {l_nomod}")
    phA.mod_loads(p)
    phA.mod_compute(p, 0)
    p(f"s_branch {l_a1done}")
    p.label(l_nomod)
    p("s_waitcnt vmcnt(0)")
    p.label(l_a1done)
    tick(p, 'A1')
    l_prep = p.newlabel('L_prep'); l_Bdone = p.newlabel('L_Bdone')
    p("s_cmp_ge_u32 s2, 160"); p(f"s_cbranch_scc1 {l_prep}")
    def mid(p):
        l = p.newlabel('L_noarr')
        p("s_cmp_ge_u32 s2, 136"); a1 = p.newlabel('L_arr'); p(f"s_cbranch_scc1 {a1}")
        p("s_cmp_ge_u32 s2, 128"); p(f"s_cbranch_scc1 {l}")
        p.label(a1)
        wait_init(p, 2, 3)
        tick(p, 'k_init')
        arrive(p, S_LINE, 2, 3)
        tick(p, 'k_arr')
        p.label(l)
        phB.conv_xloads(p)
    phK.kgen(p, mid)
    wait_lines(p, [(LN_LINE, [16]*8 + [15]*8)], 2, 3, 4)
    tick(p, 'B1_passed')
    phB.conv(p)
    p(f"s_and_b32 {s(S_LINE)}, s2, 7")
    p(f"s_add_u32 {s(S_LINE)}, {s(S_LINE)}, {CONV_LINE}")
    arrive(p, S_LINE, 2, 3)
    tick(p, 'conv_arr')
    p(f"s_branch {l_Bdone}")
    p.label(l_prep)
    wait_init(p, 2, 3)
    arrive(p, S_LINE, 2, 3)
    l_wd = p.newlabel('L_wd'); l_pd = p.newlabel('L_pdone')
    p("s_cmp_ge_u32 s2, 214"); p(f"s_cbranch_scc1 {l_wd}")
    phP.wprep_dma(p)
    wait_lines(p, [(MOD_LINE, [15]*8)], 10, 11, 12)
    tick(p, 'P_mod')
    phP.wprep(p)
    p(f"s_sub_u32 {s(S_LINE)}, s2, 160")
    p(f"s_and_b32 {s(S_LINE)}, {s(S_LINE)}, 7")
    p(f"s_add_u32 {s(S_LINE)}, {s(S_LINE)}, {WP_LINE}")
    arrive(p, S_LINE, 2, 3)
    p(f"s_branch {l_pd}")
    p.label(l_wd)
    p("s_cmp_ge_u32 s2, 254"); p(f"s_cbranch_scc1 {l_pd}")
    phP.wdprep(p)
    p(f"s_sub_u32 {s(S_LINE)}, s2, 214")
    p(f"s_and_b32 {s(S_LINE)}, {s(S_LINE)}, 7")
    p(f"s_add_u32 {s(S_LINE)}, {s(S_LINE)}, {WD_LINE}")
    arrive(p, S_LINE, 2, 3)
    p.label(l_pd)
    tick(p, 'P_done')
    p.label(l_Bdone)
    phC.ids(p)
    wait_lines(p, [(WP_LINE, [7]*6 + [6]*2 + [5]*8)], 2, 3, 4)
    tick(p, 'WP_ok')
    phC.prefetch(p)
    tick(p, 'g1_pref')
    p("s_waitcnt vmcnt(0)")
    wait_lines(p, [(CONV_LINE, [20]*8)], 2, 3, 4)
    tick(p, 'B2_passed')
    wd_next = phC.main(p)
    p(f"s_add_u32 {s(S_LINE)}, {s(phC.S_MT)}, {C_LINE}")
    arrive(p, S_LINE, 2, 3)
    tick(p, 'g1_arr')
    phD.prefetch(p, wd_next)
    p(f"s_lshr_b32 {s(S_LINE)}, {s(phC.S_MT2)}, 1")
    p(f"s_add_u32 {s(S_LINE)}, {s(S_LINE)}, {C_LINE}")
    tick(p, 'g2_pref')
    p("s_waitcnt vmcnt(0)")
    wait_lines(p, [('s', S_LINE, 16)], 2, 3, 4)
    tick(p, 'B3_passed')
    phD.main(p)
    dump_ticks(p)
    p("s_waitcnt vmcnt(0) lgkmcnt(0)")
    p.label("L_exit")
    p("s_endpgm")
    p.label("L_codeend")

def gen(name, stamps=False, pf=True):
    cfg.stamps = stamps
    common.TICKNAMES.clear()
    p = Prog()
    body(p, name, pf)
    p.fix()
    errs = p.verify()
    txt = re.sub(r'\bL_(\w+)', lambda m: f'L_{m.group(1)}', p.text())
    return kernel_text(name, txt), errs

if __name__ == '__main__':
    HDR = open(f'cdna_kernels/{NAME}.s.ref').read().split('; Override launch')[0]
    t, errs = gen(NAME + '_kernel')
    for e in errs[:30]: print('ERR', e)
    out = HDR + "; @launch grid=(256,1,1) block=(256,1,1) lds=163840\n" + '.amdgcn_target "amdgcn-amd-amdhsa--gfx950"\n' + t
    open('fused.s', 'w').write(out)
    print('fused.s', len(out), build('fused.s', 'fused.co'))
    t, errs = gen(NAME + '_kernel', pf=False)
    open('fused_nopf.s', 'w').write(HDR + "; @launch grid=(256,1,1) block=(256,1,1) lds=163840\n" + '.amdgcn_target "amdgcn-amd-amdhsa--gfx950"\n' + t)
    t, errs = gen('fusedst', stamps=True)
    for e in errs[:30]: print('ERR(st)', e)
    open('fusedst.s', 'w').write('.amdgcn_target "amdgcn-amd-amdhsa--gfx950"\n' + t)
    build('fusedst.s', 'fusedst.co')
    import json; json.dump(common.TICKNAMES, open('ticks.json', 'w'))
```
